```python
import torch

def _softmax(x, axis=-1):
    return torch.softmax(x, dim=axis)
def _gelu(x):
    return torch.nn.functional.gelu(x, approximate="tanh")
def _silu(x):
    return torch.nn.functional.silu(x)
def _sigmoid(x):
    return torch.sigmoid(x)
def _layernorm(x, axis=-1, eps=1e-5):
    m = x.mean(dim=axis, keepdim=True)
    v = x.var(dim=axis, keepdim=True, unbiased=False)
    return (x - m) / torch.sqrt(v + eps)
def _scatter_add(tgt, idx, src, axis=0):
    return tgt.clone().index_add_(axis, idx, src)
def _segment_sum(src, seg, n):
    out = torch.zeros((n,) + src.shape[1:], dtype=src.dtype)
    return out.index_add_(0, seg, src)
def _pad(x, pw):
    flat = tuple(v for pair in reversed(pw) for v in pair)
    return torch.nn.functional.pad(x, flat)

kernel_name = 'standalone__linear_kernel_rfa__decode'

def setup_inputs():

    _w = (lambda a: (lambda t: t.to(torch.bfloat16) if t.is_floating_point() else t)(torch.as_tensor(a)))
    B, H, Sq, Sk, D, M = 1, 32, 1, 4096, 128, 64
    return {
        "q": _w((lambda *s: torch.randn(*s, dtype=torch.bfloat16) * 0.2)(B, H, Sq, D)),
        "k": _w((lambda *s: torch.randn(*s, dtype=torch.bfloat16) * 1.6)(B, H, Sk, D)),
        "v": _w((lambda *s: torch.randn(*s, dtype=torch.bfloat16) * 1.6)(B, H, Sk, D)),
        "omega": _w((lambda *s: torch.randn(*s, dtype=torch.bfloat16) * 1.6)(M, D)),
    }

def reference(q, k, v, omega):
    d = q.shape[-1]
    m = omega.shape[0]
    scale = float(d) ** -0.25
    qs = q * scale
    ks = k * scale
    q_proj = torch.einsum("bhsd,md->bhsm", qs, omega)
    k_proj = torch.einsum("bhsd,md->bhsm", ks, omega)
    q_sq = 0.5 * torch.einsum("bhsd,bhsd->bhs", qs, qs)[..., None]
    k_sq = 0.5 * torch.einsum("bhsd,bhsd->bhs", ks, ks)[..., None]
    inv_sqrt_m = float(m) ** -0.5
    phi_q = torch.exp(q_proj - q_sq) * inv_sqrt_m + 1e-6
    phi_k = torch.exp(k_proj - k_sq) * inv_sqrt_m + 1e-6
    kv = torch.einsum("bhsm,bhsd->bhmd", phi_k, v)
    z  = torch.einsum("bhsm->bhm", phi_k)
    num = torch.einsum("bhqm,bhmd->bhqd", phi_q, kv)
    den = torch.einsum("bhqm,bhm->bhq", phi_q, z)[..., None] + 1e-6
    return num / den
```

```python
import re

def _regs(spec):
    spec = spec.strip()
    m = re.fullmatch(r'([vs])\[(\d+):(\d+)\]', spec)
    if m:
        return [(m.group(1), i) for i in range(int(m.group(2)), int(m.group(3)) + 1)]
    m = re.fullmatch(r'([vs])(\d+)', spec)
    if m:
        return [(m.group(1), int(m.group(2)))]
    if spec == 'vcc':
        return [('s', 106), ('s', 107)]
    if spec == 'exec':
        return [('s', 126), ('s', 127)]
    if spec == 'm0':
        return [('s', 124)]
    return []

class Ins:
    __slots__ = ('text', 'kind', 'rd', 'wr', 'dpp', 'trans', 'srcc', 'ab', 'passes', 'wide_store', 'lds_dma', 'states')
    def __init__(self, text, kind, rd=(), wr=(), dpp=False, trans=False, srcc=(), ab=(), passes=0,
                 wide_store=False, lds_dma=False, states=1):
        self.text = text; self.kind = kind
        self.rd = set(rd); self.wr = set(wr)
        self.dpp = dpp; self.trans = trans
        self.srcc = set(srcc); self.ab = set(ab); self.passes = passes
        self.wide_store = wide_store; self.lds_dma = lds_dma; self.states = states

class Asm:
    def __init__(self):
        self.out = []
        self.hist = []
        self.nops = 0
        self.count = 0

    def _need(self, prev, cur):
        n = 0
        pv_w = {r for r in prev.wr if r[0] == 'v'}
        ps_w = {r for r in prev.wr if r[0] == 's'}
        cur_vr = {r for r in cur.rd if r[0] == 'v'}
        cur_sr = {r for r in cur.rd if r[0] == 's'}
        cur_vw = {r for r in cur.wr if r[0] == 'v'}
        if prev.kind == 'valu':
            if cur.kind == 'mfma' and pv_w & cur_vr:
                n = max(n, 2)
            if cur.dpp and pv_w & cur_vr:
                n = max(n, 2)
            if cur.kind == 'valu' and cur.text.startswith('v_permlane') and pv_w & (cur_vr | cur_vw):
                n = max(n, 2)
            if cur.kind == 'valu' and (cur.text.startswith('v_readfirstlane') or cur.text.startswith('v_readlane')) and pv_w & cur_vr:
                n = max(n, 1)
            if prev.trans and cur.kind in ('valu', 'mfma', 'vmem', 'ds') and pv_w & cur_vr and not cur.trans:
                n = max(n, 1)
            if prev.trans and cur.trans and pv_w & cur_vr:
                n = max(n, 1)
            if ps_w & cur_sr:
                if cur.kind == 'vmem':
                    n = max(n, 5)
                elif cur.kind == 'valu':
                    n = max(n, 2)
                elif cur.kind == 'salu':
                    n = max(n, 4)
                elif cur.kind == 'mfma':
                    n = max(n, 4)
            if ('s', 126) in ps_w and cur.kind in ('valu', 'mfma'):
                n = max(n, 5)
        if prev.kind == 'mfma':
            P = prev.passes
            tab_ab = {2: 5, 4: 8, 8: 12, 16: 20}[P]
            tab_c = {2: 4, 4: 6, 8: 10, 16: 18}[P]
            tab_war = {2: 1, 4: 3, 8: 7, 16: 15}[P]
            if cur.kind == 'mfma':
                if pv_w & cur.ab:
                    n = max(n, tab_ab)
                if pv_w & cur.srcc:
                    if pv_w == cur.srcc and cur.passes == P and P >= 4:
                        pass
                    else:
                        n = max(n, tab_c)
                if pv_w & cur_vw and not (pv_w == cur.srcc):
                    n = max(n, tab_ab)
            else:
                if pv_w & (cur_vr | cur_vw):
                    n = max(n, tab_ab)
                if cur.kind == 'valu' and prev.srcc & cur_vw:
                    n = max(n, tab_war)
        if prev.kind == 'salu':
            if ('s', 124) in ps_w and cur.lds_dma:
                n = max(n, 1)
        if prev.wide_store:
            data_regs = {r for r in prev.rd if r[0] == 'v'}
            if data_regs & cur_vw:
                n = max(n, 2)
        return n

    def emit(self, ins):
        need = 0
        dist = 0
        for prev in reversed(self.hist):
            req = self._need(prev, ins)
            if req > dist:
                need = max(need, req - dist)
            dist += prev.states
            if dist >= 24:
                break
        while need > 0:
            k = min(need, 16)
            self.out.append(f'    s_nop {k-1}')
            self.hist.append(Ins(f's_nop {k-1}', 'nop', states=k))
            self.nops += k
            need -= k
        self.out.append('    ' + ins.text)
        self.hist.append(ins)
        self.count += 1
        if len(self.hist) > 64:
            self.hist = self.hist[-40:]

    def flush_hazards(self, n=20):
        need = 0; dist = 0
        for prev in reversed(self.hist):
            h = 0
            if prev.kind == 'mfma':
                h = {2: 5, 4: 8, 8: 12, 16: 20}[prev.passes]
            elif prev.kind == 'valu':
                h = 5 if any(r[0] == 's' for r in prev.wr) else 2
            elif prev.kind == 'salu':
                h = 1
            elif prev.wide_store:
                h = 2
            if h > dist:
                need = max(need, h - dist)
            dist += prev.states
            if dist >= 24:
                break
        while need > 0:
            k = min(need, 16)
            self.out.append(f'    s_nop {k-1}')
            self.hist.append(Ins(f's_nop {k-1}', 'nop', states=k))
            need -= k

    def raw(self, text):
        self.out.append(text)

    def label(self, name):
        self.flush_hazards()
        self.out.append(f'{name}:')

    def comment(self, c):
        self.out.append(f'    ; {c}')

    def salu(self, op, dst, *srcs, extra=''):
        rd = []
        for s in srcs:
            rd += _regs(str(s))
        wr = _regs(dst) if dst is not None else []
        ops = ', '.join([dst] + [str(s) for s in srcs]) if dst is not None else ', '.join(str(s) for s in srcs)
        self.emit(Ins(f'{op} {ops}{extra}', 'salu', rd, wr))

    def scmp(self, op, a, b):
        self.emit(Ins(f'{op} {a}, {b}', 'salu', _regs(str(a)) + _regs(str(b)), []))

    def branch(self, op, target):
        self.flush_hazards()
        self.emit(Ins(f'{op} {target}', 'branch'))

    def wait(self, vm=None, lgkm=None):
        parts = []
        if vm is not None: parts.append(f'vmcnt({vm})')
        if lgkm is not None: parts.append(f'lgkmcnt({lgkm})')
        self.emit(Ins('s_waitcnt ' + ' '.join(parts), 'other'))

    def other(self, text):
        self.emit(Ins(text, 'other'))

    def valu(self, op, dst, *srcs, mods='', dpp=False, rmw=False, sdst=None):
        rd = []
        for s in srcs:
            rd += _regs(str(s).lstrip('-').replace('abs(', '').replace(')', ''))
        wr = _regs(dst)
        if rmw or dpp:
            rd += wr
        trans = op.split('_e')[0] in ('v_exp_f32', 'v_log_f32', 'v_rcp_f32', 'v_rsq_f32', 'v_sqrt_f32', 'v_sin_f32', 'v_cos_f32')
        if op.startswith('v_cndmask') and len(srcs) == 3:
            pass
        if sdst:
            wr += _regs(sdst)
        ops = ', '.join([dst] + ([sdst] if sdst else []) + [str(s) for s in srcs])
        ins = Ins(f'{op} {ops}{(" " + mods) if mods else ""}', 'valu', rd, wr, dpp=dpp, trans=trans)
        if dpp:
            pass
        self.emit(ins)

    def vcmp(self, op, sdst, a, b):
        rd = _regs(str(a)) + _regs(str(b))
        self.emit(Ins(f'{op} {sdst}, {a}, {b}', 'valu', rd, _regs(sdst)))

    def mfma(self, shape, d, a, b, c):
        passes = 4 if shape.startswith('16x16') else 8
        ra, rb = _regs(a), _regs(b)
        rc = _regs(str(c))
        self.emit(Ins(f'v_mfma_f32_{shape}_bf16 {d}, {a}, {b}, {c}', 'mfma', ra + rb + rc, _regs(d),
                      srcc=rc, ab=ra + rb, passes=passes))

    def vmem_load(self, op, dst, voff, srd, soff, offset=0, flags='', lds=False):
        rd = _regs(srd) + _regs(str(soff))
        addr = 'off'
        fl = ''
        if voff is not None:
            rd += _regs(voff); addr = voff; fl = ' offen'
        if offset:
            fl += f' offset:{offset}'
        if flags:
            fl += ' ' + flags
        if lds:
            rd += _regs('m0')
            self.emit(Ins(f'{op} {addr}, {srd}, {soff}{fl} lds', 'vmem', rd, [], lds_dma=True))
        else:
            self.emit(Ins(f'{op} {dst}, {addr}, {srd}, {soff}{fl}', 'vmem', rd, _regs(dst)))

    def vmem_store(self, op, data, voff, srd, soff, offset=0, flags='', wr=()):
        rd = _regs(srd) + _regs(str(soff)) + _regs(data)
        addr = 'off'
        fl = ''
        if voff is not None:
            rd += _regs(voff); addr = voff; fl = ' offen'
        if offset:
            fl += f' offset:{offset}'
        if flags:
            fl += ' ' + flags
        wide = 'x3' in op or 'x4' in op
        self.emit(Ins(f'{op} {data}, {addr}, {srd}, {soff}{fl}', 'vmem', rd, list(wr), wide_store=wide))

    def ds_read(self, op, dst, addr, offset=0):
        fl = f' offset:{offset}' if offset else ''
        self.emit(Ins(f'{op} {dst}, {addr}{fl}', 'ds', _regs(addr), _regs(dst)))

    def ds_write(self, op, addr, data, offset=0):
        fl = f' offset:{offset}' if offset else ''
        self.emit(Ins(f'{op} {addr}, {data}{fl}', 'ds', _regs(addr) + _regs(data), []))

    def text(self):
        return '\n'.join(self.out) + '\n'
```

```python
import sys, struct
import numpy as np
from asmlib import Asm

def f32bits(x):
    return int(np.float32(x).view(np.uint32))

def gen(opts):
    NT_K = opts.get('nt_k', False)
    NT_V = opts.get('nt_v', False)
    EPS_BITS = opts.get('eps_bits', f32bits(1e-6))
    a = Asm()
    KNAME = 'standalone__linear_kernel_rfa__decode_kernel'

    LDS_OM = 0
    LDS_K = 16384
    LDS_RED = 16384 + 8 * 16384
    LDS_DEN = LDS_RED + 8192
    LDS_TOTAL = LDS_DEN + 256

    SRD_K, SRD_V, SRD_OM, SRD_Q, SRD_WS, SRD_DBG, SRD_OUT = 20, 24, 28, 32, 36, 40, 44
    def srd(b): return f's[{b}:{b+3}]'
    S_HEAD, S_SPLIT, S_WAVE, S_KOFF = 's48', 's49', 's50', 's51'
    S_T0, S_T1, S_T2, S_T3 = 's52', 's53', 's54', 's55'
    S_SCALE, S_HIMASK, S_LOG2E = 's56', 's57', 's58'
    S_KLDS = 's59'
    S_CNT = 's60'
    S_SLOT = 's61'

    V_TID = 'v0'
    V_LANE, V_G, V_N = 'v1', 'v2', 'v3'
    VO = [4, 5, 6, 7]
    RA = [8, 9, 10, 11]
    V_VV = 'v12'
    V_W, V_PHI2, V_PLO2 = 'v13', 'v14', 'v15'
    D3 = 16
    PVM = 20
    C1E6 = 24
    MASK = 28
    NEGH = 30
    IDA = 32
    EIGHTH = 34
    W2 = 36
    A2 = 40
    P = 48
    G = 56
    CQ = 60
    KR = 64
    KR2 = 80
    D1 = 96
    E = 112
    OM = 128
    VD = 192
    T = [KR2 + i for i in range(8)]
    def v(i): return f'v{i}'
    def vr(i, n): return f'v[{i}:{i+n-1}]'

    a.scmp('s_cmp_ge_u32', 's2', 256)
    a.emit_branch = None
    a.branch('s_cbranch_scc1', 'L_end')
    a.salu('s_load_dwordx2', f's[{SRD_K}:{SRD_K+1}]', 's[0:1]', 8)
    a.salu('s_load_dwordx2', f's[{SRD_V}:{SRD_V+1}]', 's[0:1]', 16)
    a.salu('s_load_dwordx2', f's[{SRD_OM}:{SRD_OM+1}]', 's[0:1]', 24)
    a.salu('s_load_dwordx2', f's[{SRD_Q}:{SRD_Q+1}]', 's[0:1]', 0)
    a.salu('s_load_dwordx2', f's[{SRD_WS}:{SRD_WS+1}]', 's[0:1]', 48)
    a.salu('s_load_dwordx2', f's[{SRD_DBG}:{SRD_DBG+1}]', 's[0:1]', 40)
    a.salu('s_load_dwordx2', f's[{SRD_OUT}:{SRD_OUT+1}]', 's[0:1]', 32)
    a.valu('v_lshrrev_b32', 'v13', 6, V_TID)
    a.valu('v_and_b32', V_LANE, 63, V_TID)
    a.valu('v_readfirstlane_b32', S_WAVE, 'v13')
    a.valu('v_lshrrev_b32', V_G, 4, V_LANE)
    a.valu('v_and_b32', V_N, 15, V_LANE)
    a.salu('s_and_b32', S_HEAD, 's2', 31)
    a.salu('s_lshr_b32', S_SPLIT, 's2', 5)
    for b, size in ((SRD_K, 1 << 25), (SRD_V, 1 << 25), (SRD_OM, 16384), (SRD_Q, 8192), (SRD_WS, 1 << 20), (SRD_DBG, 256), (SRD_OUT, 8192)):
        a.salu('s_mov_b32', f's{b+2}', hex(size))
        a.salu('s_mov_b32', f's{b+3}', '0x00020000')
    a.valu('v_xor_b32', 'v14', V_G, V_N)
    a.valu('v_lshlrev_b32', 'v14', 4, 'v14')
    a.valu('v_lshl_or_b32', v(VO[0]), V_G, 8, 'v14')
    a.valu('v_lshl_or_b32', v(RA[0]), V_N, 8, 'v14')
    for i in range(1, 4):
        a.valu('v_xor_b32', v(VO[i]), i << 6, v(VO[0]))
        a.valu('v_xor_b32', v(RA[i]), i << 6, v(RA[0]))
    a.valu('v_lshlrev_b32', 'v15', 4, V_N)
    a.valu('v_lshl_or_b32', V_VV, V_G, 12, 'v15')
    a.salu('s_lshl_b32', S_KOFF, S_HEAD, 20)
    a.salu('s_lshl_b32', S_T0, S_SPLIT, 17)
    a.salu('s_or_b32', S_KOFF, S_KOFF, S_T0)
    a.salu('s_lshl_b32', S_T0, S_WAVE, 14)
    a.salu('s_or_b32', S_KOFF, S_KOFF, S_T0)
    a.salu('s_add_u32', S_KLDS, S_T0, LDS_K)
    a.salu('s_lshl_b32', S_SLOT, S_HEAD, 3)
    a.salu('s_add_u32', S_SLOT, S_SLOT, S_SPLIT)
    a.salu('s_lshl_b32', S_SLOT, S_SLOT, 10)
    a.salu('s_and_b32', S_T1, S_WAVE, 1)
    a.salu('s_lshl_b32', S_T1, S_T1, 7)
    a.valu('v_xor_b32', 'v16', S_T1, v(VO[0]))
    a.valu('v_xor_b32', 'v17', S_T1, v(VO[1]))
    a.salu('s_lshl_b32', S_T2, S_WAVE, 11)
    a.valu('v_lshlrev_b32', 'v18', 4, V_G)
    a.salu('s_lshl_b32', S_T3, S_HEAD, 8)
    for i in range(4):
        a.valu('v_mov_b32', v(20 + i), -1)
    a.valu('v_lshlrev_b32', 'v19', 4, V_LANE)
    a.wait(lgkm=0)
    a.scmp('s_cmp_eq_u32', S_WAVE, 0)
    a.salu('s_cselect_b32', S_CNT, S_SPLIT, 0)
    a.scmp('s_cmp_eq_u32', S_CNT, 0)
    a.branch('s_cbranch_scc1', 'L_noclear')
    a.vmem_store('buffer_store_dwordx4', vr(20, 4), 'v19', srd(SRD_WS), S_SLOT, flags='sc1')
    a.label('L_noclear')
    a.salu('s_mov_b32', 'm0', S_T2)
    a.vmem_load('buffer_load_dwordx4', None, 'v16', srd(SRD_OM), S_T2, lds=True)
    a.vmem_load('buffer_load_dwordx4', None, 'v17', srd(SRD_OM), S_T2, offset=1024, lds=True)
    for u in range(4):
        a.vmem_load('buffer_load_dwordx4', vr(KR + 4 * u, 4), 'v18', srd(SRD_Q), S_T3, offset=64 * u)
    for b in range(4):
        a.salu('s_add_u32', S_T0, S_KLDS, 4096 * b)
        a.salu('s_mov_b32', 'm0', S_T0)
        a.salu('s_add_u32', S_T1, S_KOFF, 4096 * b)
        for i in range(4):
            a.vmem_load('buffer_load_dwordx4', None, v(VO[i]), srd(SRD_K), S_T1, offset=1024 * i,
                        flags='nt' if NT_K else '', lds=True)
    for t in range(16):
        a.vmem_load('buffer_load_dwordx4', vr(VD + 4 * t, 4), V_VV, srd(SRD_V), S_KOFF, offset=256 * t,
                    flags='nt' if NT_V else '')

    a.salu('s_mov_b32', S_SCALE, hex(f32bits(float(128) ** -0.25)))
    a.salu('s_mov_b32', S_HIMASK, '0xffff0000')
    a.salu('s_mov_b32', S_LOG2E, hex(f32bits(1.4426950408889634)))
    a.valu('v_lshrrev_b32', 'v13', 2, V_N)
    a.valu('v_and_b32', 'v14', 3, V_N)
    a.valu('v_and_b32', 'v15', 1, V_N)
    a.valu('v_mov_b32', 'v16', '0xffff')
    a.valu('v_mov_b32', 'v17', S_HIMASK)
    a.vcmp('v_cmp_eq_u32', 'vcc', 1, 'v15')
    a.valu('v_cndmask_b32', 'v16', 'v16', 'v17', 'vcc')
    a.vcmp('v_cmp_eq_u32', 'vcc', V_G, 'v13')
    a.valu('v_cndmask_b32', 'v17', 0, 'v16', 'vcc')
    a.vcmp('v_cmp_gt_u32', 'vcc', 2, 'v14')
    a.valu('v_cndmask_b32', v(MASK), 0, 'v17', 'vcc')
    a.valu('v_cndmask_b32', v(MASK + 1), 'v17', 0, 'vcc')
    a.valu('v_and_b32', v(IDA), '0x3f803f80', v(MASK))
    a.valu('v_and_b32', v(IDA + 1), '0x3f803f80', v(MASK + 1))
    a.valu('v_and_b32', v(EIGHTH), '0x3e003e00', v(MASK))
    a.valu('v_and_b32', v(EIGHTH + 1), '0x3e003e00', v(MASK + 1))
    a.valu('v_mov_b32', v(NEGH), '0xbf00bf00')
    a.valu('v_mov_b32', v(NEGH + 1), '0xbf00bf00')
    for i in range(4):
        a.valu('v_mov_b32', v(C1E6 + i), hex(EPS_BITS))
    a.valu('v_bfe_u32', 'v13', V_N, 1, 2)
    for r in range(4):
        a.vcmp('v_cmp_eq_u32', 'vcc', r, 'v13')
        a.valu('v_cndmask_b32', v(PVM + r), 0, 'v16', 'vcc')

    a.wait(vm=32)
    a.other('s_barrier')
    for tm in range(4):
        for u in range(4):
            a.ds_read('ds_read_b128', vr(OM + 16 * tm + 4 * u, 4), v(RA[u]), offset=LDS_OM + 4096 * tm)
    RK = [4, 5, 6, 7]
    for u in range(4):
        a.valu('v_add_u32', v(RK[u]), S_KLDS, v(RA[u]))

    def tile(kr, dest_phi, first_wait=None):
        for u in range(4):
            for i in range(4):
                x = kr + 4 * u + i
                t0, t1 = T[(2 * i) % 8], T[(2 * i + 1) % 8]
                a.valu('v_lshlrev_b32', v(t0), 16, v(x))
                a.valu('v_and_b32', v(t1), S_HIMASK, v(x))
                a.valu('v_mul_f32', v(t0), S_SCALE, v(t0))
                a.valu('v_mul_f32', v(t1), S_SCALE, v(t1))
                a.valu('v_cvt_pk_bf16_f32', v(x), v(t0), v(t1))
            f = vr(kr + 4 * u, 4)
            a.mfma('16x16x32', vr(G, 4), f, f, 0 if u == 0 else vr(G, 4))
            if u == 0 and first_wait is not None:
                a.wait(lgkm=first_wait)
            for tm in range(4):
                a.mfma('16x16x32', vr(D1 + 4 * tm, 4), vr(OM + 16 * tm + 4 * u, 4), f,
                       0 if u == 0 else vr(D1 + 4 * tm, 4))
        a.valu('v_cvt_pk_bf16_f32', v(P), v(G), v(G + 1))
        a.valu('v_cvt_pk_bf16_f32', v(P + 1), v(G + 2), v(G + 3))
        a.valu('v_and_b32', v(P), v(P), v(MASK))
        a.valu('v_and_b32', v(P + 1), v(P + 1), v(MASK + 1))
        a.mfma('16x16x16', vr(CQ, 4), vr(NEGH, 2), vr(P, 2), 0)
        Q = dest_phi
        for tm in range(4):
            a.valu('v_cvt_pk_bf16_f32', v(Q + 2 * tm), v(D1 + 4 * tm), v(D1 + 4 * tm + 1))
            a.valu('v_cvt_pk_bf16_f32', v(Q + 2 * tm + 1), v(D1 + 4 * tm + 2), v(D1 + 4 * tm + 3))
        for tm in range(4):
            a.mfma('16x16x16', vr(E + 4 * tm, 4), vr(IDA, 2), vr(Q + 2 * tm, 2), vr(CQ, 4))
        for tm in range(4):
            a.valu('v_cvt_pk_bf16_f32', v(Q + 2 * tm), v(E + 4 * tm), v(E + 4 * tm + 1))
            a.valu('v_cvt_pk_bf16_f32', v(Q + 2 * tm + 1), v(E + 4 * tm + 2), v(E + 4 * tm + 3))
        for tm in range(4):
            for h in range(2):
                x = Q + 2 * tm + h
                d0, d1 = D1 + 4 * tm + 2 * h, D1 + 4 * tm + 2 * h + 1
                a.valu('v_lshlrev_b32', v(d0), 16, v(x))
                a.valu('v_and_b32', v(d1), S_HIMASK, v(x))
                a.valu('v_mul_f32', v(d0), S_LOG2E, v(d0))
                a.valu('v_mul_f32', v(d1), S_LOG2E, v(d1))
        for i in range(16):
            a.valu('v_exp_f32', v(D1 + i), v(D1 + i))
        for tm in range(4):
            a.valu('v_cvt_pk_bf16_f32', v(Q + 2 * tm), v(D1 + 4 * tm), v(D1 + 4 * tm + 1))
            a.valu('v_cvt_pk_bf16_f32', v(Q + 2 * tm + 1), v(D1 + 4 * tm + 2), v(D1 + 4 * tm + 3))
        for tm in range(4):
            a.mfma('16x16x16', vr(E + 4 * tm, 4), vr(EIGHTH, 2), vr(Q + 2 * tm, 2), vr(C1E6, 4))
        for tm in range(4):
            a.valu('v_cvt_pk_bf16_f32', v(Q + 2 * tm), v(E + 4 * tm), v(E + 4 * tm + 1))
            a.valu('v_cvt_pk_bf16_f32', v(Q + 2 * tm + 1), v(E + 4 * tm + 2), v(E + 4 * tm + 3))

    tile(KR, A2, first_wait=0)
    for tk in range(4):
        a.wait(vm=28 - 4 * tk)
        if tk == 1:
            a.scmp('s_cmp_eq_u32', S_CNT, 0)
            a.branch('s_cbranch_scc1', 'L_noflag')
            a.salu('s_mov_b64', 's[62:63]', 'exec')
            a.salu('s_mov_b64', 'exec', 1)
            a.valu('v_mov_b32', v(T[0]), 1)
            a.salu('s_lshl_b32', S_T0, S_HEAD, 2)
            a.vmem_store('buffer_atomic_add', v(T[0]), None, srd(SRD_DBG), S_T0, flags='sc1')
            a.salu('s_mov_b64', 'exec', 's[62:63]')
            a.label('L_noflag')
        for u in range(4):
            a.ds_read('ds_read_b128', vr(KR + 4 * u, 4), v(RK[u]), offset=4096 * tk)
        a.wait(lgkm=0)
        tile(KR, P)
        a.mfma('16x16x32', vr(W2, 4), vr(A2, 4), vr(P, 4), 0)
        a.mfma('16x16x32', vr(W2, 4), vr(A2 + 4, 4), vr(P + 4, 4), vr(W2, 4))
        a.valu('v_mov_b32_dpp', V_W, v(W2), mods=f'quad_perm:[0,1,2,3] row_mask:{hex(1 << tk)} bank_mask:0xf', dpp=True)

    a.valu('v_cvt_pk_bf16_f32', V_PHI2, V_W, V_W)
    a.valu('v_and_b32', v(T[0]), S_HIMASK, V_PHI2)
    a.valu('v_sub_f32', v(T[0]), V_W, v(T[0]))
    a.valu('v_cvt_pk_bf16_f32', V_PLO2, v(T[0]), v(T[0]))
    a.valu('v_mov_b32', v(T[1]), V_W)
    for sh in (8, 4, 2, 1):
        a.valu('v_add_f32_dpp', v(T[1]), v(T[1]), v(T[1]), mods=f'row_ror:{sh} row_mask:0xf bank_mask:0xf', dpp=True)
    a.salu('s_lshl_b32', S_T0, S_WAVE, 4)
    a.salu('s_add_u32', S_T0, S_T0, LDS_DEN)
    a.valu('v_lshl_add_u32', v(T[2]), V_G, 2, S_T0)
    a.ds_write('ds_write_b32', v(T[2]), v(T[1]))
    for t in range(16):
        tmp = T[3 + (t & 1)]
        a.valu('v_mov_b32_dpp', v(tmp), V_PHI2, mods=f'row_newbcast:{t} row_mask:0xf bank_mask:0x3', dpp=True)
        a.valu('v_mov_b32_dpp', v(tmp), V_PLO2, mods=f'row_newbcast:{t} row_mask:0xf bank_mask:0xc', dpp=True)
        for r in range(4):
            a.valu('v_and_b32', v(OM + 4 * t + r), v(tmp), v(PVM + r))
    a.wait(lgkm=0)
    a.other('s_barrier')
    a.valu('v_mov_b32', v(T[2]), LDS_DEN)
    for i in range(8):
        a.ds_read('ds_read_b128', vr(D1 + 4 * (i % 4), 4) if i < 4 else vr(E + 4 * (i % 4), 4), v(T[2]), offset=16 * i)
    a.salu('s_lshl_b32', S_T0, S_HEAD, 2)
    a.vmem_load('buffer_load_dword', v(T[5]), None, srd(SRD_DBG), S_T0, flags='sc1')
    a.wait(lgkm=0)
    DEN = T[6]
    a.valu('v_add_f32', v(DEN), v(D1), v(D1 + 1))
    for i in range(2, 32):
        a.valu('v_add_f32', v(DEN), v(DEN), v(D1 + i))
    RED_W, RED_R = T[0], T[1]
    a.salu('s_lshl_b32', S_T0, S_WAVE, 10)
    a.salu('s_add_u32', S_T0, S_T0, LDS_RED)
    a.valu('v_lshl_add_u32', v(RED_W), V_LANE, 4, S_T0)
    a.valu('v_lshrrev_b32', v(T[2]), 5, V_TID)
    a.valu('v_and_b32', v(T[3]), 7, V_TID)
    a.valu('v_lshl_add_u32', v(T[2]), v(T[2]), 4, v(T[3]))
    a.valu('v_bfe_u32', v(T[3]), V_TID, 3, 2)
    a.valu('v_lshlrev_b32', v(T[3]), 2, v(T[3]))
    a.valu('v_lshl_add_u32', v(RED_R), v(T[2]), 4, v(T[3]))
    a.valu('v_add_u32', v(RED_R), LDS_RED, v(RED_R))
    V_D8 = T[2]
    a.valu('v_lshlrev_b32', v(V_D8), 3, V_TID)

    for t in range(16):
        a.wait(vm=16 - t)
        a.mfma('16x16x32', vr(D3, 4), vr(VD + 4 * t, 4), vr(OM + 4 * t, 4), 0 if t == 0 else vr(D3, 4))
    a.ds_write('ds_write_b128', v(RED_W), vr(D3, 4))
    a.wait(lgkm=0)
    a.other('s_barrier')
    a.scmp('s_cmp_ge_u32', S_WAVE, 2)
    a.branch('s_cbranch_scc1', 'L_end')
    for i in range(16):
        a.ds_read('ds_read_b32', v(D1 + i), v(RED_R), offset=1024 * (i >> 1) + 128 * (i & 1))
    a.wait(lgkm=0)
    NUM = T[4]
    a.valu('v_add_f32', v(NUM), v(D1), v(D1 + 1))
    for i in range(2, 16):
        a.valu('v_add_f32', v(NUM), v(NUM), v(D1 + i))
    a.scmp('s_cmp_eq_u32', S_SPLIT, 0)
    a.branch('s_cbranch_scc1', 'L_consumer')
    a.valu('v_min_u32', v(D3), -2, v(NUM))
    a.valu('v_min_u32', v(D3 + 1), -2, v(DEN))
    a.vmem_store('buffer_store_dwordx2', vr(D3, 2), v(V_D8), srd(SRD_WS), S_SLOT, flags='sc1')
    a.other('s_endpgm')
    a.label('L_consumer')
    a.salu('s_mov_b32', S_T1, 0)
    a.salu('s_lshl_b32', S_T0, S_HEAD, 2)
    a.wait(vm=0)
    a.label('L_flagloop')
    a.vcmp('v_cmp_ne_u32', 'vcc', 7, v(T[5]))
    a.branch('s_cbranch_vccz', 'L_poll')
    a.salu('s_add_u32', S_T1, S_T1, 1)
    a.scmp('s_cmp_gt_u32', S_T1, 0x100000)
    a.branch('s_cbranch_scc1', 'L_end')
    a.vmem_load('buffer_load_dword', v(T[5]), None, srd(SRD_DBG), S_T0, flags='sc1')
    a.wait(vm=0)
    a.branch('s_branch', 'L_flagloop')
    a.label('L_poll')
    for j in range(1, 8):
        a.vmem_load('buffer_load_dwordx2', vr(D1 + 2 * j, 2), v(V_D8), srd(SRD_WS), S_SLOT, offset=0 if j == 0 else 0, flags='sc1') if False else None
    a.salu('s_mov_b32', S_T1, 0)
    a.label('L_pollloop')
    for j in range(1, 8):
        a.salu('s_add_u32', S_T2, S_SLOT, 1024 * j)
        a.vmem_load('buffer_load_dwordx2', vr(D1 + 2 * j, 2), v(V_D8), srd(SRD_WS), S_T2, flags='sc1')
    a.wait(vm=0)
    a.valu('v_max3_u32', v(E), v(D1 + 2), v(D1 + 3), v(D1 + 4))
    for k in range(5):
        a.valu('v_max3_u32', v(E), v(E), v(D1 + 5 + 2 * k), v(D1 + 6 + 2 * k))
    a.valu('v_max_u32', v(E), v(E), v(D1 + 15))
    a.vcmp('v_cmp_eq_u32', 'vcc', -1, v(E))
    a.branch('s_cbranch_vccz', 'L_done')
    a.salu('s_add_u32', S_T1, S_T1, 1)
    a.scmp('s_cmp_gt_u32', S_T1, 0x100000)
    a.branch('s_cbranch_scc0', 'L_pollloop')
    a.label('L_done')
    for j in range(1, 8):
        a.valu('v_add_f32', v(NUM), v(NUM), v(D1 + 2 * j))
        a.valu('v_add_f32', v(DEN), v(DEN), v(D1 + 2 * j + 1))
    a.valu('v_add_f32', v(DEN), hex(f32bits(1e-6)), v(DEN))
    a.valu('v_rcp_f32', v(E), v(DEN))
    a.valu('v_mul_f32', v(NUM), v(NUM), v(E))
    a.valu('v_cvt_pk_bf16_f32', v(NUM), v(NUM), v(NUM))
    a.salu('s_lshl_b32', S_T0, S_HEAD, 8)
    a.valu('v_lshlrev_b32', v(E), 1, V_TID)
    a.vmem_store('buffer_store_short', v(NUM), v(E), srd(SRD_OUT), S_T0)
    a.label('L_end')
    a.other('s_endpgm')

    hdr = open('standalone__linear_kernel_rfa__decode.s.ref').read().split('\n')
    head_comments = [l for l in hdr if l.startswith(';') and '@launch' not in l and 'Override' not in l and 'grid=ceil' not in l]
    txt = '\n'.join(head_comments) + '\n'
    txt += f'; @launch grid=(256,1,1) block=(512,1,1) lds={LDS_TOTAL}\n'
    txt += '.amdgcn_target "amdgcn-amd-amdhsa--gfx950"\n.text\n'
    txt += f'.globl {KNAME}\n.p2align 8\n.type {KNAME},@function\n{KNAME}:\n'
    txt += a.text()
    txt += f'''.section .rodata,"a"
.p2align 6
.amdhsa_kernel {KNAME}
  .amdhsa_next_free_vgpr 256
  .amdhsa_next_free_sgpr 72
  .amdhsa_accum_offset 256
  .amdhsa_group_segment_fixed_size 0
  .amdhsa_kernarg_size 56
  .amdhsa_user_sgpr_count 2
  .amdhsa_user_sgpr_kernarg_segment_ptr 1
  .amdhsa_system_sgpr_workgroup_id_x 1
  .amdhsa_float_denorm_mode_32 3
.end_amdhsa_kernel
'''
    return txt, a

if __name__ == '__main__':
    out = sys.argv[1]
    opts = {}
    for kv in sys.argv[2:]:
        k, val = kv.split('=')
        opts[k] = int(val, 0)
    txt, a = gen(opts)
    open(out, 'w').write(txt)
    print('instructions', a.count, 'nop states', a.nops)
```

```python
import sys
import numpy as np
from asmlib import Asm

def f32bits(x):
    return int(np.float32(x).view(np.uint32))

KNAME = 'standalone__linear_kernel_rfa__decode_kernel'

def gen(opts):
    NT = opts.get('nt', 1)
    PF = opts.get('pf', 3)
    PB = opts.get('pb', 1)
    STAMPS = opts.get('stamps', 0)
    EPS_BITS = 0x35860000
    a = Asm()
    nst = [0]
    def stamp():
        if STAMPS:
            i = nst[0]; nst[0] += 1
            assert 64 + 2 * i + 1 <= 101
            a.salu('s_memrealtime', f's[{64+2*i}:{65+2*i}]')
    def dump_stamps():
        if not STAMPS: return
        a.wait(lgkm=0)
        a.salu('s_mov_b64', 'exec', -1)
        a.valu('v_mov_b32', 'v100', 0)
        for i in range(nst[0]):
            a.valu('v_writelane_b32', 'v100', f's{64+2*i}', i, rmw=True)
        a.salu('s_getreg_b32', 's52', 'hwreg(HW_REG_XCC_ID)')
        a.valu('v_writelane_b32', 'v100', 's52', 31, rmw=True)
        a.salu('s_lshl_b32', 's52', 's2', 3)
        a.salu('s_add_u32', 's52', 's52', 's50')
        a.salu('s_lshl_b32', 's52', 's52', 7)
        a.salu('s_add_u32', 's52', 's52', 0x80000)
        a.valu('v_lshlrev_b32', 'v101', 2, 'v1')
        a.vcmp('v_cmp_gt_u32', 'vcc', 32, 'v1')
        a.salu('s_and_b64', 'exec', 'exec', 'vcc')
        a.vmem_store('buffer_store_dword', 'v100', 'v101', 's[36:39]', 's52')
        a.salu('s_mov_b64', 'exec', -1)

    LDS_OM = 0
    LDS_K = 16384
    LDS_RED = 16384 + 8 * 16384
    LDS_DEN = LDS_RED + 8192
    LDS_TOTAL = LDS_DEN + 256

    SRD_K, SRD_V, SRD_OM, SRD_Q, SRD_WS, SRD_DBG, SRD_OUT = 20, 24, 28, 32, 36, 40, 44
    def srd(b): return f's[{b}:{b+3}]'
    S_HEAD, S_SPLIT, S_WAVE, S_KOFF = 's48', 's49', 's50', 's51'
    S_T0, S_T1, S_T2, S_T3 = 's52', 's53', 's54', 's55'
    S_KLDS, S_CNT, S_SLOT = 's59', 's60', 's61'

    V_TID, V_LANE, V_G, V_N = 'v0', 'v1', 'v2', 'v3'
    VO = [4, 5, 6, 7]; RA = [8, 9, 10, 11]; RK = [120, 121, 122, 123]
    V_VV, V_W, V_PHI2, V_PLO2 = 'v12', 'v13', 'v14', 'v15'
    D3, PVM, CEPS, MASK, NEGH, IDA = 16, 20, 24, 28, 30, 32
    VSCALE, VHI, VLOG2E = 'v34', 'v35', 'v36'
    A2, Q, G, CQ, KR = 40, 48, 56, 60, 64
    E = KR
    T = [80 + i for i in range(8)]
    W2 = 88
    D1 = 104
    EIGHTH, C1E6 = 124, 88
    OM, VD = 128, 192
    def v(i): return f'v{i}'
    def vr(i, n): return f'v[{i}:{i+n-1}]'
    ntf = 'nt' if NT else ''

    a.scmp('s_cmp_ge_u32', 's2', 256)
    a.branch('s_cbranch_scc1', 'L_end')
    stamp()
    a.salu('s_load_dwordx2', f's[{SRD_K}:{SRD_K+1}]', 's[0:1]', 8)
    a.salu('s_load_dwordx2', f's[{SRD_OM}:{SRD_OM+1}]', 's[0:1]', 24)
    a.salu('s_load_dwordx2', f's[{SRD_Q}:{SRD_Q+1}]', 's[0:1]', 0)
    a.salu('s_load_dwordx2', f's[{SRD_WS}:{SRD_WS+1}]', 's[0:1]', 48)
    a.salu('s_load_dwordx2', f's[{SRD_V}:{SRD_V+1}]', 's[0:1]', 16)
    a.salu('s_load_dwordx2', f's[{SRD_DBG}:{SRD_DBG+1}]', 's[0:1]', 40)
    a.salu('s_load_dwordx2', f's[{SRD_OUT}:{SRD_OUT+1}]', 's[0:1]', 32)
    a.valu('v_lshrrev_b32', 'v13', 6, V_TID)
    a.valu('v_and_b32', V_LANE, 63, V_TID)
    a.valu('v_readfirstlane_b32', S_WAVE, 'v13')
    a.valu('v_lshrrev_b32', V_G, 4, V_LANE)
    a.valu('v_and_b32', V_N, 15, V_LANE)
    a.salu('s_and_b32', S_HEAD, 's2', 31)
    a.salu('s_lshr_b32', S_SPLIT, 's2', 5)
    for b, size in ((SRD_K, 1 << 25), (SRD_V, 1 << 25), (SRD_OM, 16384), (SRD_Q, 8192), (SRD_WS, 1 << 20), (SRD_DBG, 256), (SRD_OUT, 8192)):
        a.salu('s_mov_b32', f's{b+2}', hex(size))
        a.salu('s_mov_b32', f's{b+3}', '0x00020000')
    a.valu('v_xor_b32', 'v14', V_G, V_N)
    a.valu('v_lshlrev_b32', 'v14', 4, 'v14')
    a.valu('v_lshl_or_b32', v(VO[0]), V_G, 8, 'v14')
    a.valu('v_lshl_or_b32', v(RA[0]), V_N, 8, 'v14')
    for i in range(1, 4):
        a.valu('v_xor_b32', v(VO[i]), i << 6, v(VO[0]))
        a.valu('v_xor_b32', v(RA[i]), i << 6, v(RA[0]))
    a.valu('v_lshlrev_b32', 'v15', 4, V_N)
    a.valu('v_lshl_or_b32', V_VV, V_G, 12, 'v15')
    a.salu('s_lshl_b32', S_KOFF, S_HEAD, 20)
    a.salu('s_lshl_b32', S_T0, S_SPLIT, 17)
    a.salu('s_or_b32', S_KOFF, S_KOFF, S_T0)
    a.salu('s_lshl_b32', S_T0, S_WAVE, 14)
    a.salu('s_or_b32', S_KOFF, S_KOFF, S_T0)
    a.salu('s_add_u32', S_KLDS, S_T0, LDS_K)
    a.salu('s_lshl_b32', S_SLOT, S_HEAD, 3)
    a.salu('s_add_u32', S_SLOT, S_SLOT, S_SPLIT)
    a.salu('s_lshl_b32', S_SLOT, S_SLOT, 10)
    a.salu('s_and_b32', S_T1, S_WAVE, 1)
    a.salu('s_lshl_b32', S_T1, S_T1, 7)
    a.valu('v_xor_b32', 'v16', S_T1, v(VO[0]))
    a.valu('v_xor_b32', 'v17', S_T1, v(VO[1]))
    a.salu('s_lshl_b32', S_T2, S_WAVE, 11)
    a.valu('v_lshlrev_b32', 'v18', 4, V_G)
    a.salu('s_lshl_b32', S_T3, S_HEAD, 8)
    for i in range(4):
        a.valu('v_mov_b32', v(20 + i), -1)
    a.valu('v_lshlrev_b32', 'v19', 4, V_LANE)
    a.scmp('s_cmp_eq_u32', S_WAVE, 0)
    a.salu('s_cselect_b32', S_CNT, S_SPLIT, 0)
    a.wait(lgkm=0)
    stamp()

    def group(gi):
        if gi < 4:
            a.salu('s_add_u32', S_T0, S_KLDS, 4096 * gi)
            a.salu('s_mov_b32', 'm0', S_T0)
            a.salu('s_add_u32', S_T1, S_KOFF, 4096 * gi)
            for i in range(4):
                a.vmem_load('buffer_load_dwordx4', None, v(VO[i]), srd(SRD_K), S_T1, offset=1024 * i, flags=ntf, lds=True)
        else:
            for t in range(4 * (gi - 4), 4 * (gi - 4) + 4):
                a.vmem_load('buffer_load_dwordx4', vr(VD + 4 * t, 4), V_VV, srd(SRD_V), S_KOFF, offset=256 * t, flags=ntf)

    a.salu('s_mov_b32', 'm0', S_T2)
    a.vmem_load('buffer_load_dwordx4', None, 'v16', srd(SRD_OM), S_T2, lds=True)
    a.vmem_load('buffer_load_dwordx4', None, 'v17', srd(SRD_OM), S_T2, offset=1024, lds=True)
    for u in range(4):
        a.vmem_load('buffer_load_dwordx4', vr(KR + 4 * u, 4), 'v18', srd(SRD_Q), S_T3, offset=64 * u)
    a.scmp('s_cmp_eq_u32', S_CNT, 0)
    a.branch('s_cbranch_scc1', 'L_noclear')
    a.vmem_store('buffer_store_dwordx4', vr(20, 4), 'v19', srd(SRD_WS), S_SLOT, flags='sc1')
    a.label('L_noclear')
    for gi in range(PB):
        group(gi)
    stamp()

    a.valu('v_mov_b32', VSCALE, hex(f32bits(float(128) ** -0.25)))
    a.valu('v_mov_b32', VHI, '0xffff0000')
    a.valu('v_mov_b32', VLOG2E, hex(f32bits(1.4426950408889634)))
    a.valu('v_lshrrev_b32', 'v13', 2, V_N)
    a.valu('v_and_b32', 'v14', 3, V_N)
    a.valu('v_and_b32', 'v15', 1, V_N)
    a.valu('v_mov_b32', 'v16', '0xffff')
    a.vcmp('v_cmp_eq_u32', 'vcc', 1, 'v15')
    a.valu('v_cndmask_b32', 'v16', 'v16', VHI, 'vcc')
    a.vcmp('v_cmp_eq_u32', 'vcc', V_G, 'v13')
    a.valu('v_cndmask_b32', 'v17', 0, 'v16', 'vcc')
    a.vcmp('v_cmp_gt_u32', 'vcc', 2, 'v14')
    a.valu('v_cndmask_b32', v(MASK), 0, 'v17', 'vcc')
    a.valu('v_cndmask_b32', v(MASK + 1), 'v17', 0, 'vcc')
    a.valu('v_and_b32', v(IDA), '0x3f803f80', v(MASK))
    a.valu('v_and_b32', v(IDA + 1), '0x3f803f80', v(MASK + 1))
    a.valu('v_and_b32', v(EIGHTH), '0x3e003e00', v(MASK))
    a.valu('v_and_b32', v(EIGHTH + 1), '0x3e003e00', v(MASK + 1))
    a.valu('v_mov_b32', v(NEGH), '0xbf00bf00')
    a.valu('v_mov_b32', v(NEGH + 1), '0xbf00bf00')
    for i in range(4):
        a.valu('v_mov_b32', v(C1E6 + i), hex(EPS_BITS))
    a.valu('v_bfe_u32', 'v13', V_N, 1, 2)
    for r in range(4):
        a.vcmp('v_cmp_eq_u32', 'vcc', r, 'v13')
        a.valu('v_cndmask_b32', v(PVM + r), 0, 'v16', 'vcc')
    for u in range(4):
        a.valu('v_add_u32', v(RK[u]), S_KLDS, v(RA[u]))

    a.wait(vm=4 * PB)
    stamp()
    a.other('s_barrier')
    nextg = PB
    if nextg < min(PF, 2):
        group(nextg); nextg += 1
    for tm in range(4):
        for u in range(4):
            a.ds_read('ds_read_b128', vr(OM + 16 * tm + 4 * u, 4), v(RA[u]), offset=LDS_OM + 4096 * tm)

    def scale_ops(kr, u):
        ops = []
        for i in range(4):
            x = kr + 4 * u + i
            t0, t1 = T[2 * i], T[2 * i + 1]
            ops.append(('v_lshlrev_b32', v(t0), 16, v(x)))
            ops.append(('v_and_b32', v(t1), VHI, v(x)))
        for i in range(4):
            t0, t1 = T[2 * i], T[2 * i + 1]
            ops.append(('v_mul_f32', v(t0), VSCALE, v(t0)))
            ops.append(('v_mul_f32', v(t1), VSCALE, v(t1)))
        for i in range(4):
            x = kr + 4 * u + i
            t0, t1 = T[2 * i], T[2 * i + 1]
            ops.append(('v_cvt_pk_bf16_f32', v(x), v(t0), v(t1)))
        return ops

    def mf(u, j, kr):
        f = vr(kr + 4 * u, 4)
        if j == 0:
            a.mfma('16x16x32', vr(G, 4), f, f, 0 if u == 0 else vr(G, 4))
        else:
            tm = j - 1
            a.mfma('16x16x32', vr(D1 + 4 * tm, 4), vr(OM + 16 * tm + 4 * u, 4), f, 0 if u == 0 else vr(D1 + 4 * tm, 4))

    def tile(kr, qdst, is_q, wait_om=False):
        for op in scale_ops(kr, 0):
            a.valu(*op)
        if wait_om:
            a.wait(lgkm=0)
        for u in range(1, 4):
            ops = scale_ops(kr, u)
            for j in range(5):
                mf(u - 1, j, kr)
                for op in ops[4 * j: 4 * j + 4]:
                    a.valu(*op)
        for j in range(5):
            mf(3, j, kr)
        a.valu('v_cvt_pk_bf16_f32', v(T[0]), v(G), v(G + 1))
        a.valu('v_cvt_pk_bf16_f32', v(T[1]), v(G + 2), v(G + 3))
        a.valu('v_and_b32', v(T[0]), v(T[0]), v(MASK))
        a.valu('v_and_b32', v(T[1]), v(T[1]), v(MASK + 1))
        def cvt(dst, src, tm):
            a.valu('v_cvt_pk_bf16_f32', v(dst + 2 * tm), v(src + 4 * tm), v(src + 4 * tm + 1))
            a.valu('v_cvt_pk_bf16_f32', v(dst + 2 * tm + 1), v(src + 4 * tm + 2), v(src + 4 * tm + 3))
        cvt(qdst, D1, 0)
        a.mfma('16x16x16', vr(CQ, 4), vr(NEGH, 2), vr(T[0], 2), 0)
        cvt(qdst, D1, 1)
        a.mfma('16x16x16', vr(E, 4), vr(IDA, 2), vr(qdst, 2), vr(CQ, 4))
        cvt(qdst, D1, 2)
        a.mfma('16x16x16', vr(E + 4, 4), vr(IDA, 2), vr(qdst + 2, 2), vr(CQ, 4))
        cvt(qdst, D1, 3)
        a.mfma('16x16x16', vr(E + 8, 4), vr(IDA, 2), vr(qdst + 4, 2), vr(CQ, 4))
        a.mfma('16x16x16', vr(E + 12, 4), vr(IDA, 2), vr(qdst + 6, 2), vr(CQ, 4))
        for tm in range(4):
            cvt(qdst, E, tm)
        for tm in range(4):
            for h in range(2):
                x = qdst + 2 * tm + h
                d0, d1 = D1 + 4 * tm + 2 * h, D1 + 4 * tm + 2 * h + 1
                a.valu('v_lshlrev_b32', v(d0), 16, v(x))
                a.valu('v_and_b32', v(d1), VHI, v(x))
        for i in range(16):
            a.valu('v_mul_f32', v(D1 + i), VLOG2E, v(D1 + i))
        for i in range(16):
            a.valu('v_exp_f32', v(D1 + i), v(D1 + i))
        if is_q:
            for tm in range(4):
                cvt(qdst, D1, tm)
            for tm in range(4):
                a.mfma('16x16x16', vr(E + 4 * tm, 4), vr(EIGHTH, 2), vr(qdst + 2 * tm, 2), vr(C1E6, 4))
            for tm in range(4):
                cvt(qdst, E, tm)
        else:
            for tm in range(4):
                cvt(qdst, D1, tm)

    tile(KR, A2, True, wait_om=True)
    a.valu('v_mov_b32', v(T[0]), '0x3f803f80')
    for i in range(1, 4):
        a.valu('v_mov_b32', v(T[i]), '0x3f803f80')
    a.mfma('16x16x32', vr(CEPS, 4), vr(A2, 4), vr(T[0], 4), 0)
    a.mfma('16x16x32', vr(CEPS, 4), vr(A2 + 4, 4), vr(T[0], 4), vr(CEPS, 4))
    for i in range(8):
        a.valu('v_sub_u32', v(A2 + i), v(A2 + i), '0x01800180') if False else a.valu('v_subrev_u32', v(A2 + i), '0x01800180', v(A2 + i))
    a.valu('v_mov_b32', v(T[4]), hex(EPS_BITS))
    for i in range(4):
        a.valu('v_mul_f32', v(CEPS + i), v(T[4]), v(CEPS + i))

    while nextg < PF:
        group(nextg); nextg += 1
    for tk in range(4):
        stamp()
        a.wait(vm=4 * (PF - 1))
        stamp()
        for u in range(4):
            a.ds_read('ds_read_b128', vr(KR + 4 * u, 4), v(RK[u]), offset=4096 * tk)
        if nextg < 8:
            group(nextg); nextg += 1
        if tk == 1:
            a.scmp('s_cmp_eq_u32', S_CNT, 0)
            a.branch('s_cbranch_scc1', 'L_noflag')
            a.salu('s_mov_b64', 's[62:63]', 'exec')
            a.salu('s_mov_b64', 'exec', 1)
            a.valu('v_mov_b32', v(T[0]), 1)
            a.salu('s_lshl_b32', S_T0, S_HEAD, 2)
            a.vmem_store('buffer_atomic_add', v(T[0]), None, srd(SRD_DBG), S_T0, flags='sc1')
            a.salu('s_mov_b64', 'exec', 's[62:63]')
            a.label('L_noflag')
        a.wait(lgkm=0)
        tile(KR, Q, False)
        a.mfma('16x16x32', vr(W2 + 4 * tk, 4), vr(A2, 4), vr(Q, 4), vr(CEPS, 4))
        a.mfma('16x16x32', vr(W2 + 4 * tk, 4), vr(A2 + 4, 4), vr(Q + 4, 4), vr(W2 + 4 * tk, 4))
    while nextg < 8:
        group(nextg); nextg += 1
    for tk in range(4):
        a.valu('v_mov_b32_dpp', V_W, v(W2 + 4 * tk), mods=f'quad_perm:[0,1,2,3] row_mask:{hex(1 << tk)} bank_mask:0xf', dpp=True)

    a.valu('v_cvt_pk_bf16_f32', V_PHI2, V_W, V_W)
    a.valu('v_mov_b32', v(T[1]), V_W)
    a.valu('v_and_b32', v(T[0]), VHI, V_PHI2)
    a.valu('v_sub_f32', v(T[0]), V_W, v(T[0]))
    a.valu('v_cvt_pk_bf16_f32', V_PLO2, v(T[0]), v(T[0]))
    for sh in (8, 4, 2, 1):
        a.valu('v_add_f32_dpp', v(T[1]), v(T[1]), v(T[1]), mods=f'row_ror:{sh} row_mask:0xf bank_mask:0xf', dpp=True)
    a.salu('s_lshl_b32', S_T0, S_WAVE, 4)
    a.salu('s_add_u32', S_T0, S_T0, LDS_DEN)
    a.valu('v_lshl_add_u32', v(T[2]), V_G, 2, S_T0)
    a.ds_write('ds_write_b32', v(T[2]), v(T[1]))
    for t in range(16):
        tmp = T[3 + (t & 1)]
        a.valu('v_mov_b32_dpp', v(tmp), V_PHI2, mods=f'row_newbcast:{t} row_mask:0xf bank_mask:0x3', dpp=True)
        a.valu('v_mov_b32_dpp', v(tmp), V_PLO2, mods=f'row_newbcast:{t} row_mask:0xf bank_mask:0xc', dpp=True)
        for r in range(4):
            a.valu('v_and_b32', v(OM + 4 * t + r), v(tmp), v(PVM + r))
    stamp()
    a.wait(lgkm=0)
    a.other('s_barrier')
    stamp()
    a.valu('v_mov_b32', v(T[2]), LDS_DEN)
    for i in range(8):
        a.ds_read('ds_read_b128', vr(W2 + 4 * i, 4), v(T[2]), offset=16 * i)
    a.salu('s_lshl_b32', S_T0, S_HEAD, 2)
    a.vmem_load('buffer_load_dword', v(T[5]), None, srd(SRD_DBG), S_T0, flags='sc1')
    RED_W, RED_R = T[0], T[1]
    a.salu('s_lshl_b32', S_T0, S_WAVE, 10)
    a.salu('s_add_u32', S_T0, S_T0, LDS_RED)
    a.valu('v_lshl_add_u32', v(RED_W), V_LANE, 4, S_T0)
    a.valu('v_lshrrev_b32', v(T[2]), 5, V_TID)
    a.valu('v_and_b32', v(T[3]), 7, V_TID)
    a.valu('v_lshl_add_u32', v(T[2]), v(T[2]), 4, v(T[3]))
    a.valu('v_bfe_u32', v(T[3]), V_TID, 3, 2)
    a.valu('v_lshlrev_b32', v(T[3]), 2, v(T[3]))
    a.valu('v_lshl_add_u32', v(RED_R), v(T[2]), 4, v(T[3]))
    a.valu('v_add_u32', v(RED_R), LDS_RED, v(RED_R))
    V_D8 = T[2]
    a.valu('v_lshlrev_b32', v(V_D8), 3, V_TID)
    a.wait(lgkm=0)
    DEN = T[6]
    for st in (16, 8, 4, 2):
        for i in range(st):
            a.valu('v_add_f32', v(W2 + i), v(W2 + i), v(W2 + i + st))
    a.valu('v_add_f32', v(DEN), v(W2), v(W2 + 1))

    for t in range(16):
        a.wait(vm=16 - t)
        if t in (0, 8, 15): stamp()
        a.mfma('16x16x32', vr(D3, 4), vr(VD + 4 * t, 4), vr(OM + 4 * t, 4), 0 if t == 0 else vr(D3, 4))
    a.ds_write('ds_write_b128', v(RED_W), vr(D3, 4))
    a.wait(lgkm=0)
    a.other('s_barrier')
    stamp()
    a.scmp('s_cmp_ge_u32', S_WAVE, 2)
    a.branch('s_cbranch_scc1', 'L_end2')
    for i in range(16):
        a.ds_read('ds_read_b32', v(W2 + i), v(RED_R), offset=1024 * (i >> 1) + 128 * (i & 1))
    a.wait(lgkm=0)
    NUM = T[4]
    for st in (8, 4, 2):
        for i in range(st):
            a.valu('v_add_f32', v(W2 + i), v(W2 + i), v(W2 + i + st))
    a.valu('v_add_f32', v(NUM), v(W2), v(W2 + 1))
    a.scmp('s_cmp_eq_u32', S_SPLIT, 0)
    a.branch('s_cbranch_scc1', 'L_consumer')
    a.valu('v_min_u32', v(D3), -2, v(NUM))
    a.valu('v_min_u32', v(D3 + 1), -2, v(DEN))
    a.vmem_store('buffer_store_dwordx2', vr(D3, 2), v(V_D8), srd(SRD_WS), S_SLOT, flags='sc1')
    a.branch('s_branch', 'L_end2')
    a.label('L_consumer')
    a.salu('s_mov_b32', S_T1, 0)
    a.salu('s_lshl_b32', S_T0, S_HEAD, 2)
    a.wait(vm=0)
    a.label('L_flagloop')
    a.vcmp('v_cmp_gt_u32', 'vcc', 7, v(T[5]))
    a.branch('s_cbranch_vccz', 'L_poll')
    a.salu('s_add_u32', S_T1, S_T1, 1)
    a.scmp('s_cmp_gt_u32', S_T1, 0x40000)
    a.branch('s_cbranch_scc1', 'L_end2')
    a.vmem_load('buffer_load_dword', v(T[5]), None, srd(SRD_DBG), S_T0, flags='sc1')
    a.wait(vm=0)
    a.branch('s_branch', 'L_flagloop')
    a.label('L_poll')
    a.salu('s_mov_b32', S_T1, 0)
    a.label('L_pollloop')
    for j in range(1, 8):
        a.salu('s_add_u32', S_T2, S_SLOT, 1024 * j)
        a.vmem_load('buffer_load_dwordx2', vr(D1 + 2 * j, 2), v(V_D8), srd(SRD_WS), S_T2, flags='sc1')
    a.wait(vm=0)
    a.valu('v_max3_u32', v(E), v(D1 + 2), v(D1 + 3), v(D1 + 4))
    for k in range(5):
        a.valu('v_max3_u32', v(E), v(E), v(D1 + 5 + 2 * k), v(D1 + 6 + 2 * k))
    a.valu('v_max_u32', v(E), v(E), v(D1 + 15))
    a.vcmp('v_cmp_eq_u32', 'vcc', -1, v(E))
    a.branch('s_cbranch_vccz', 'L_done')
    a.salu('s_add_u32', S_T1, S_T1, 1)
    a.scmp('s_cmp_gt_u32', S_T1, 0x40000)
    a.branch('s_cbranch_scc0', 'L_pollloop')
    a.label('L_done')
    for j in range(1, 8):
        a.valu('v_add_f32', v(NUM), v(NUM), v(D1 + 2 * j))
        a.valu('v_add_f32', v(DEN), v(DEN), v(D1 + 2 * j + 1))
    a.valu('v_add_f32', v(DEN), hex(EPS_BITS), v(DEN))
    a.valu('v_rcp_f32', v(E), v(DEN))
    a.valu('v_mul_f32', v(NUM), v(NUM), v(E))
    a.valu('v_cvt_pk_bf16_f32', v(NUM), v(NUM), v(NUM))
    a.salu('s_lshl_b32', S_T0, S_HEAD, 8)
    a.valu('v_lshlrev_b32', v(E), 1, V_TID)
    a.vmem_store('buffer_store_short', v(NUM), v(E), srd(SRD_OUT), S_T0)
    a.label('L_end2')
    stamp()
    dump_stamps()
    a.label('L_end')
    a.other('s_endpgm')

    hdr = open('standalone__linear_kernel_rfa__decode.s.ref').read().split('\n')
    head_comments = [l for l in hdr if l.startswith(';') and '@launch' not in l and 'Override' not in l and 'grid=ceil' not in l]
    txt = '\n'.join(head_comments) + '\n'
    txt += f'; @launch grid=(256,1,1) block=(512,1,1) lds={LDS_TOTAL}\n'
    txt += '.amdgcn_target "amdgcn-amd-amdhsa--gfx950"\n.text\n'
    txt += f'.globl {KNAME}\n.p2align 8\n.type {KNAME},@function\n{KNAME}:\n'
    txt += a.text()
    txt += f'''.section .rodata,"a"
.p2align 6
.amdhsa_kernel {KNAME}
  .amdhsa_next_free_vgpr 256
  .amdhsa_next_free_sgpr 102
  .amdhsa_accum_offset 256
  .amdhsa_group_segment_fixed_size 0
  .amdhsa_kernarg_size 56
  .amdhsa_user_sgpr_count 2
  .amdhsa_user_sgpr_kernarg_segment_ptr 1
  .amdhsa_system_sgpr_workgroup_id_x 1
  .amdhsa_float_denorm_mode_32 3
.end_amdhsa_kernel
'''
    return txt, a

if __name__ == '__main__':
    out = sys.argv[1]
    opts = {}
    for kv in sys.argv[2:]:
        k, val = kv.split('=')
        opts[k] = int(val, 0)
    txt, a = gen(opts)
    open(out, 'w').write(txt)
    print('instructions', a.count, 'nop states', a.nops)
```

```python
import re

def _regs(spec):
    spec = spec.strip()
    m = re.fullmatch(r'([vs])\[(\d+):(\d+)\]', spec)
    if m:
        return [(m.group(1), i) for i in range(int(m.group(2)), int(m.group(3)) + 1)]
    m = re.fullmatch(r'([vs])(\d+)', spec)
    if m:
        return [(m.group(1), int(m.group(2)))]
    if spec == 'vcc':
        return [('s', 106), ('s', 107)]
    if spec == 'exec':
        return [('s', 126), ('s', 127)]
    if spec == 'm0':
        return [('s', 124)]
    return []

class Ins:
    __slots__ = ('text', 'kind', 'rd', 'wr', 'dpp', 'trans', 'srcc', 'ab', 'passes', 'wide_store', 'lds_dma', 'states')
    def __init__(self, text, kind, rd=(), wr=(), dpp=False, trans=False, srcc=(), ab=(), passes=0,
                 wide_store=False, lds_dma=False, states=1):
        self.text = text; self.kind = kind
        self.rd = set(rd); self.wr = set(wr)
        self.dpp = dpp; self.trans = trans
        self.srcc = set(srcc); self.ab = set(ab); self.passes = passes
        self.wide_store = wide_store; self.lds_dma = lds_dma; self.states = states

class Asm:
    def __init__(self):
        self.out = []
        self.hist = []
        self.nops = 0
        self.count = 0

    def _need(self, prev, cur):
        n = 0
        pv_w = {r for r in prev.wr if r[0] == 'v'}
        ps_w = {r for r in prev.wr if r[0] == 's'}
        cur_vr = {r for r in cur.rd if r[0] == 'v'}
        cur_sr = {r for r in cur.rd if r[0] == 's'}
        cur_vw = {r for r in cur.wr if r[0] == 'v'}
        if prev.kind == 'valu':
            if cur.kind == 'mfma' and pv_w & cur_vr:
                n = max(n, 2)
            if cur.dpp and pv_w & cur_vr:
                n = max(n, 2)
            if cur.kind == 'valu' and cur.text.startswith('v_permlane') and pv_w & (cur_vr | cur_vw):
                n = max(n, 2)
            if cur.kind == 'valu' and (cur.text.startswith('v_readfirstlane') or cur.text.startswith('v_readlane')) and pv_w & cur_vr:
                n = max(n, 1)
            if prev.trans and cur.kind in ('valu', 'mfma', 'vmem', 'ds') and pv_w & cur_vr and not cur.trans:
                n = max(n, 1)
            if prev.trans and cur.trans and pv_w & cur_vr:
                n = max(n, 1)
            if ps_w & cur_sr:
                if cur.kind == 'vmem':
                    n = max(n, 5)
                elif cur.kind == 'valu':
                    n = max(n, 2)
                elif cur.kind == 'salu':
                    n = max(n, 4)
                elif cur.kind == 'mfma':
                    n = max(n, 4)
            if ('s', 126) in ps_w and cur.kind in ('valu', 'mfma'):
                n = max(n, 5)
        if prev.kind == 'mfma':
            P = prev.passes
            tab_ab = {2: 5, 4: 8, 8: 12, 16: 20}[P]
            tab_c = {2: 4, 4: 6, 8: 10, 16: 18}[P]
            tab_war = {2: 1, 4: 3, 8: 7, 16: 15}[P]
            if cur.kind == 'mfma':
                if pv_w & cur.ab:
                    n = max(n, tab_ab)
                if pv_w & cur.srcc:
                    if pv_w == cur.srcc and cur.passes == P and P >= 4:
                        pass
                    else:
                        n = max(n, tab_c)
                if pv_w & cur_vw and not (pv_w == cur.srcc):
                    n = max(n, tab_ab)
            else:
                if pv_w & (cur_vr | cur_vw):
                    n = max(n, tab_ab)
                if cur.kind == 'valu' and prev.srcc & cur_vw:
                    n = max(n, tab_war)
        if prev.kind == 'salu':
            if ('s', 124) in ps_w and cur.lds_dma:
                n = max(n, 1)
        if prev.wide_store:
            data_regs = {r for r in prev.rd if r[0] == 'v'}
            if data_regs & cur_vw:
                n = max(n, 2)
        return n

    def emit(self, ins):
        need = 0
        dist = 0
        for prev in reversed(self.hist):
            req = self._need(prev, ins)
            if req > dist:
                need = max(need, req - dist)
            dist += prev.states
            if dist >= 24:
                break
        while need > 0:
            k = min(need, 16)
            self.out.append(f'    s_nop {k-1}')
            self.hist.append(Ins(f's_nop {k-1}', 'nop', states=k))
            self.nops += k
            need -= k
        self.out.append('    ' + ins.text)
        self.hist.append(ins)
        self.count += 1
        if len(self.hist) > 64:
            self.hist = self.hist[-40:]

    def flush_hazards(self, n=20):
        need = 0; dist = 0
        for prev in reversed(self.hist):
            h = 0
            if prev.kind == 'mfma':
                h = {2: 5, 4: 8, 8: 12, 16: 20}[prev.passes]
            elif prev.kind == 'valu':
                h = 5 if any(r[0] == 's' for r in prev.wr) else 2
            elif prev.kind == 'salu':
                h = 1
            elif prev.wide_store:
                h = 2
            if h > dist:
                need = max(need, h - dist)
            dist += prev.states
            if dist >= 24:
                break
        while need > 0:
            k = min(need, 16)
            self.out.append(f'    s_nop {k-1}')
            self.hist.append(Ins(f's_nop {k-1}', 'nop', states=k))
            need -= k

    def raw(self, text):
        self.out.append(text)

    def label(self, name):
        self.flush_hazards()
        self.out.append(f'{name}:')

    def comment(self, c):
        self.out.append(f'    ; {c}')

    def salu(self, op, dst, *srcs, extra=''):
        rd = []
        for s in srcs:
            rd += _regs(str(s))
        wr = _regs(dst) if dst is not None else []
        ops = ', '.join([dst] + [str(s) for s in srcs]) if dst is not None else ', '.join(str(s) for s in srcs)
        self.emit(Ins(f'{op} {ops}{extra}', 'salu', rd, wr))

    def scmp(self, op, a, b):
        self.emit(Ins(f'{op} {a}, {b}', 'salu', _regs(str(a)) + _regs(str(b)), []))

    def branch(self, op, target):
        self.flush_hazards()
        self.emit(Ins(f'{op} {target}', 'branch'))

    def wait(self, vm=None, lgkm=None):
        parts = []
        if vm is not None: parts.append(f'vmcnt({vm})')
        if lgkm is not None: parts.append(f'lgkmcnt({lgkm})')
        self.emit(Ins('s_waitcnt ' + ' '.join(parts), 'other'))

    def other(self, text):
        self.emit(Ins(text, 'other'))

    def valu(self, op, dst, *srcs, mods='', dpp=False, rmw=False, sdst=None):
        rd = []
        for s in srcs:
            rd += _regs(str(s).lstrip('-').replace('abs(', '').replace(')', ''))
        wr = _regs(dst)
        if rmw or dpp:
            rd += wr
        trans = op.split('_e')[0] in ('v_exp_f32', 'v_log_f32', 'v_rcp_f32', 'v_rsq_f32', 'v_sqrt_f32', 'v_sin_f32', 'v_cos_f32')
        if op.startswith('v_cndmask') and len(srcs) == 3:
            pass
        if sdst:
            wr += _regs(sdst)
        ops = ', '.join([dst] + ([sdst] if sdst else []) + [str(s) for s in srcs])
        ins = Ins(f'{op} {ops}{(" " + mods) if mods else ""}', 'valu', rd, wr, dpp=dpp, trans=trans)
        if dpp:
            pass
        self.emit(ins)

    def vcmp(self, op, sdst, a, b):
        rd = _regs(str(a)) + _regs(str(b))
        self.emit(Ins(f'{op} {sdst}, {a}, {b}', 'valu', rd, _regs(sdst)))

    def mfma(self, shape, d, a, b, c):
        passes = 4 if shape.startswith('16x16') else 8
        ra, rb = _regs(a), _regs(b)
        rc = _regs(str(c))
        self.emit(Ins(f'v_mfma_f32_{shape}_bf16 {d}, {a}, {b}, {c}', 'mfma', ra + rb + rc, _regs(d),
                      srcc=rc, ab=ra + rb, passes=passes))

    def vmem_load(self, op, dst, voff, srd, soff, offset=0, flags='', lds=False):
        rd = _regs(srd) + _regs(str(soff))
        addr = 'off'
        fl = ''
        if voff is not None:
            rd += _regs(voff); addr = voff; fl = ' offen'
        if offset:
            fl += f' offset:{offset}'
        if flags:
            fl += ' ' + flags
        if lds:
            rd += _regs('m0')
            self.emit(Ins(f'{op} {addr}, {srd}, {soff}{fl} lds', 'vmem', rd, [], lds_dma=True))
        else:
            self.emit(Ins(f'{op} {dst}, {addr}, {srd}, {soff}{fl}', 'vmem', rd, _regs(dst)))

    def vmem_store(self, op, data, voff, srd, soff, offset=0, flags='', wr=()):
        rd = _regs(srd) + _regs(str(soff)) + _regs(data)
        addr = 'off'
        fl = ''
        if voff is not None:
            rd += _regs(voff); addr = voff; fl = ' offen'
        if offset:
            fl += f' offset:{offset}'
        if flags:
            fl += ' ' + flags
        wide = 'x3' in op or 'x4' in op
        self.emit(Ins(f'{op} {data}, {addr}, {srd}, {soff}{fl}', 'vmem', rd, list(wr), wide_store=wide))

    def ds_read(self, op, dst, addr, offset=0):
        fl = f' offset:{offset}' if offset else ''
        self.emit(Ins(f'{op} {dst}, {addr}{fl}', 'ds', _regs(addr), _regs(dst)))

    def ds_write(self, op, addr, data, offset=0):
        fl = f' offset:{offset}' if offset else ''
        self.emit(Ins(f'{op} {addr}, {data}{fl}', 'ds', _regs(addr) + _regs(data), []))

    def text(self):
        return '\n'.join(self.out) + '\n'


class SAsm(Asm):
    def __init__(self):
        super().__init__()
        self.region = None

    def begin(self):
        assert self.region is None
        self.region = []

    def emit(self, ins):
        if self.region is not None:
            self.region.append(ins)
        else:
            super().emit(ins)

    def wait_for(self, regs, vm=None, lgkm=None):
        parts = []
        if vm is not None: parts.append(f'vmcnt({vm})')
        if lgkm is not None: parts.append(f'lgkmcnt({lgkm})')
        rr = []
        for r in regs:
            rr += _regs(r)
        ins = Ins('s_waitcnt ' + ' '.join(parts), 'wait', rr, rr)
        self.emit(ins)

    def end(self, verbose=False):
        R = self.region
        self.region = None
        n = len(R)
        ORDERED = ('ds', 'vmem', 'wait', 'other', 'salu', 'branch')
        preds = [set() for _ in range(n)]
        succs = [set() for _ in range(n)]
        lastw = {}; readers = {}
        last_ord = None
        for j, ins in enumerate(R):
            for r in ins.rd:
                if r in lastw: preds[j].add(lastw[r])
            for r in ins.wr:
                if r in lastw: preds[j].add(lastw[r])
                for i in readers.get(r, ()):
                    if i != j: preds[j].add(i)
            if ins.kind in ORDERED:
                if last_ord is not None: preds[j].add(last_ord)
                last_ord = j
            for r in ins.rd:
                readers.setdefault(r, []).append(j)
            for r in ins.wr:
                lastw[r] = j; readers[r] = []
        for j in range(n):
            for i in preds[j]: succs[i].add(j)
        def need(i, j):
            if R[i].kind == 'wait' or R[j].kind == 'wait':
                return 0
            return self._need(R[i], R[j])
        def cost(ins):
            return 2 if (ins.kind == 'valu' and ins.trans) else 1
        prio = [0] * n
        for i in range(n - 1, -1, -1):
            best = 0
            for j in succs[i]:
                lat = need(i, j)
                if R[i].kind == 'ds' and R[j].kind == 'wait' and (R[i].wr & R[j].rd): lat = 30
                best = max(best, prio[j] + lat)
            prio[i] = best + cost(R[i]) + (2 if R[i].kind == 'mfma' else 0)
        done = [False] * n
        npred = [len(p) for p in preds]
        ready = [i for i in range(n) if npred[i] == 0]
        slot = 0
        pos = {}
        cyc = 0; pipe_free = 0; issue_cyc = {}
        order = []
        while ready:
            best = None
            for c in ready:
                st = 0
                for p in preds[c]:
                    st = max(st, need(p, c) - (slot - pos[p] - 1))
                    if R[p].kind == 'ds' and R[c].kind == 'wait' and (R[p].wr & R[c].rd):
                        st = max(st, (issue_cyc[p] + 128 - cyc + 3) // 4)
                pst = 0
                if R[c].kind == 'mfma' and pipe_free > cyc:
                    pst = (pipe_free - cyc + 3) // 4
                key = (max(st, 0) + pst, -prio[c], c)
                if best is None or key < best[0]:
                    best = (key, c, max(st, 0))
            _, c, st = best
            ready.remove(c)
            hard = 0
            for p in preds[c]:
                hard = max(hard, need(p, c) - (slot - pos[p] - 1))
            slot += max(hard, 0)
            cyc += 4 * max(st, 0)
            if R[c].kind == 'mfma':
                cyc = max(cyc, pipe_free)
                pipe_free = cyc + 4 * R[c].passes
            pos[c] = slot; issue_cyc[c] = cyc
            slot += 1
            cyc += 4 * cost(R[c])
            order.append(c)
            for j in succs[c]:
                npred[j] -= 1
                if npred[j] == 0: ready.append(j)
        assert len(order) == n
        n0 = self.nops
        for c in order:
            ins = R[c]
            if ins.kind == 'wait':
                ins = Ins(ins.text, 'other')
            Asm.emit(self, ins)
        if verbose:
            print(f'region: {n} instrs, est {cyc} cycles, nops {self.nops - n0}')
```

```python
import sys
import numpy as np
from asmlib import SAsm, Ins, _regs

def f32bits(x):
    return int(np.float32(x).view(np.uint32))

KNAME = 'standalone__linear_kernel_rfa__decode_kernel'

def gen(opts):
    NT = opts.get('nt', 1)
    PF = opts.get('pf', 2)
    PB = opts.get('pb', 1)
    STAMPS = opts.get('stamps', 0)
    VERB = opts.get('verbose', 0)
    EPS_BITS = 0x35860000
    a = SAsm()
    nst = [0]
    def stamp():
        if STAMPS:
            i = nst[0]; nst[0] += 1
            assert 64 + 2 * i + 1 <= 101
            a.emit(Ins(f's_memrealtime s[{64+2*i}:{65+2*i}]', 'other'))
    def dump_stamps():
        if not STAMPS: return
        a.wait(lgkm=0)
        a.salu('s_mov_b64', 'exec', -1)
        a.valu('v_mov_b32', 'v100', 0)
        for i in range(nst[0]):
            a.valu('v_writelane_b32', 'v100', f's{64+2*i}', i, rmw=True)
        a.salu('s_getreg_b32', 's52', 'hwreg(HW_REG_XCC_ID)')
        a.valu('v_writelane_b32', 'v100', 's52', 31, rmw=True)
        a.salu('s_lshl_b32', 's52', 's2', 3)
        a.salu('s_add_u32', 's52', 's52', 's50')
        a.salu('s_lshl_b32', 's52', 's52', 7)
        a.salu('s_add_u32', 's52', 's52', 0x80000)
        a.valu('v_lshlrev_b32', 'v101', 2, 'v1')
        a.vcmp('v_cmp_gt_u32', 'vcc', 32, 'v1')
        a.salu('s_and_b64', 'exec', 'exec', 'vcc')
        a.vmem_store('buffer_store_dword', 'v100', 'v101', 's[36:39]', 's52')
        a.salu('s_mov_b64', 'exec', -1)

    LDS_OM = 0
    LDS_K = 16384
    LDS_RED = 16384 + 8 * 16384
    LDS_DEN = LDS_RED + 8192
    LDS_Q = LDS_DEN + 256
    LDS_TOTAL = LDS_Q + 1024

    SRD_K, SRD_V, SRD_OM, SRD_Q, SRD_WS, SRD_DBG, SRD_OUT = 20, 24, 28, 32, 36, 40, 44
    def srd(b): return f's[{b}:{b+3}]'
    S_HEAD, S_SPLIT, S_WAVE, S_KOFF = 's48', 's49', 's50', 's51'
    S_T0, S_T1, S_T2, S_T3 = 's52', 's53', 's54', 's55'
    S_KLDS, S_CNT, S_SLOT = 's59', 's60', 's61'

    V_TID, V_LANE, V_G, V_N = 'v0', 'v1', 'v2', 'v3'
    VO = [4, 5, 6, 7]; RA = [8, 9, 10, 11]; RK8 = [120, 121, 122, 123]
    V_VV, V_W, V_PHI2, V_PLO2 = 'v12', 'v13', 'v14', 'v15'
    D3, PVM, CEPS, MASK, NEGH, IDA = 16, 20, 24, 28, 30, 32
    VHI, VLOG2E = 'v34', 'v35'
    AS = 36
    A2, Q, G, CQ, KS = 40, 48, 56, 60, 64
    E = KS
    SD = 80
    T = [92, 93, 94, 95, 80, 81, 82, 83]
    W2 = 96
    D1 = 104
    EIGHTH, C1E6, VQ = 124, 100, 126
    OM, VD = 128, 192
    RAW = 224
    def v(i): return f'v{i}'
    def vr(i, n): return f'v[{i}:{i+n-1}]'
    ntf = 'nt' if NT else ''

    a.scmp('s_cmp_ge_u32', 's2', 256)
    a.branch('s_cbranch_scc1', 'L_end')
    stamp()
    a.salu('s_load_dwordx2', f's[{SRD_K}:{SRD_K+1}]', 's[0:1]', 8)
    a.salu('s_load_dwordx2', f's[{SRD_OM}:{SRD_OM+1}]', 's[0:1]', 24)
    a.salu('s_load_dwordx2', f's[{SRD_Q}:{SRD_Q+1}]', 's[0:1]', 0)
    a.salu('s_load_dwordx2', f's[{SRD_WS}:{SRD_WS+1}]', 's[0:1]', 48)
    a.salu('s_load_dwordx2', f's[{SRD_V}:{SRD_V+1}]', 's[0:1]', 16)
    a.salu('s_load_dwordx2', f's[{SRD_DBG}:{SRD_DBG+1}]', 's[0:1]', 40)
    a.salu('s_load_dwordx2', f's[{SRD_OUT}:{SRD_OUT+1}]', 's[0:1]', 32)
    a.valu('v_lshrrev_b32', 'v13', 6, V_TID)
    a.valu('v_and_b32', V_LANE, 63, V_TID)
    a.valu('v_readfirstlane_b32', S_WAVE, 'v13')
    a.valu('v_lshrrev_b32', V_G, 4, V_LANE)
    a.valu('v_and_b32', V_N, 15, V_LANE)
    a.salu('s_and_b32', S_HEAD, 's2', 31)
    a.salu('s_lshr_b32', S_SPLIT, 's2', 5)
    for b, size in ((SRD_K, 1 << 25), (SRD_V, 1 << 25), (SRD_OM, 16384), (SRD_Q, 8192), (SRD_WS, 1 << 20), (SRD_DBG, 256), (SRD_OUT, 8192)):
        a.salu('s_mov_b32', f's{b+2}', hex(size))
        a.salu('s_mov_b32', f's{b+3}', '0x00020000')
    a.valu('v_xor_b32', 'v14', V_G, V_N)
    a.valu('v_lshlrev_b32', 'v14', 4, 'v14')
    a.valu('v_lshl_or_b32', v(VO[0]), V_G, 8, 'v14')
    a.valu('v_lshl_or_b32', v(RA[0]), V_N, 8, 'v14')
    for i in range(1, 4):
        a.valu('v_xor_b32', v(VO[i]), i << 6, v(VO[0]))
        a.valu('v_xor_b32', v(RA[i]), i << 6, v(RA[0]))
    a.valu('v_lshlrev_b32', 'v15', 4, V_N)
    a.valu('v_lshl_or_b32', V_VV, V_G, 12, 'v15')
    a.salu('s_lshl_b32', S_KOFF, S_HEAD, 20)
    a.salu('s_lshl_b32', S_T0, S_SPLIT, 17)
    a.salu('s_or_b32', S_KOFF, S_KOFF, S_T0)
    a.salu('s_lshl_b32', S_T0, S_WAVE, 14)
    a.salu('s_or_b32', S_KOFF, S_KOFF, S_T0)
    a.salu('s_add_u32', S_KLDS, S_T0, LDS_K)
    a.salu('s_lshl_b32', S_SLOT, S_HEAD, 3)
    a.salu('s_add_u32', S_SLOT, S_SLOT, S_SPLIT)
    a.salu('s_lshl_b32', S_SLOT, S_SLOT, 10)
    a.salu('s_and_b32', S_T1, S_WAVE, 1)
    a.salu('s_lshl_b32', S_T1, S_T1, 7)
    a.valu('v_xor_b32', 'v16', S_T1, v(VO[0]))
    a.valu('v_xor_b32', 'v17', S_T1, v(VO[1]))
    a.salu('s_lshl_b32', S_T2, S_WAVE, 11)
    a.salu('s_lshl_b32', S_T3, S_HEAD, 8)
    for i in range(4):
        a.valu('v_mov_b32', v(20 + i), -1)
    a.valu('v_lshlrev_b32', 'v19', 4, V_LANE)
    a.scmp('s_cmp_eq_u32', S_WAVE, 0)
    a.salu('s_cselect_b32', S_CNT, S_SPLIT, 0)
    a.wait(lgkm=0)
    stamp()

    def group(gi):
        if gi < 4:
            a.salu('s_add_u32', S_T0, S_KLDS, 4096 * gi)
            a.salu('s_mov_b32', 'm0', S_T0)
            a.salu('s_add_u32', S_T1, S_KOFF, 4096 * gi)
            for i in range(4):
                a.vmem_load('buffer_load_dwordx4', None, v(VO[i]), srd(SRD_K), S_T1, offset=1024 * i, flags=ntf, lds=True)
        else:
            for t in range(4 * (gi - 4), 4 * (gi - 4) + 4):
                a.vmem_load('buffer_load_dwordx4', vr(VD + 4 * t, 4), V_VV, srd(SRD_V), S_KOFF, offset=256 * t, flags=ntf)

    a.salu('s_mov_b32', 'm0', S_T2)
    a.vmem_load('buffer_load_dwordx4', None, 'v16', srd(SRD_OM), S_T2, lds=True)
    a.vmem_load('buffer_load_dwordx4', None, 'v17', srd(SRD_OM), S_T2, offset=1024, lds=True)
    a.scmp('s_cmp_lg_u32', S_WAVE, 1)
    a.branch('s_cbranch_scc1', 'L_noq')
    a.salu('s_mov_b32', 'm0', LDS_Q)
    a.vmem_load('buffer_load_dwordx4', None, 'v19', srd(SRD_Q), S_T3, lds=True)
    a.label('L_noq')
    a.scmp('s_cmp_eq_u32', S_CNT, 0)
    a.branch('s_cbranch_scc1', 'L_noclear')
    a.vmem_store('buffer_store_dwordx4', vr(20, 4), 'v19', srd(SRD_WS), S_SLOT, flags='sc1')
    a.label('L_noclear')
    for gi in range(PB):
        group(gi)
    stamp()

    a.valu('v_mov_b32', VHI, '0xffff0000')
    a.valu('v_mov_b32', VLOG2E, hex(f32bits(1.4426950408889634)))
    a.valu('v_lshrrev_b32', 'v13', 2, V_N)
    a.valu('v_and_b32', 'v14', 3, V_N)
    a.valu('v_and_b32', 'v15', 1, V_N)
    a.valu('v_mov_b32', 'v16', '0xffff')
    a.vcmp('v_cmp_eq_u32', 'vcc', 1, 'v15')
    a.valu('v_cndmask_b32', 'v16', 'v16', VHI, 'vcc')
    a.vcmp('v_cmp_eq_u32', 'vcc', V_G, 'v13')
    a.valu('v_cndmask_b32', 'v17', 0, 'v16', 'vcc')
    a.vcmp('v_cmp_gt_u32', 'vcc', 2, 'v14')
    a.valu('v_cndmask_b32', v(MASK), 0, 'v17', 'vcc')
    a.valu('v_cndmask_b32', v(MASK + 1), 'v17', 0, 'vcc')
    a.valu('v_and_b32', v(IDA), '0x3f803f80', v(MASK))
    a.valu('v_and_b32', v(IDA + 1), '0x3f803f80', v(MASK + 1))
    a.valu('v_and_b32', v(EIGHTH), '0x3e003e00', v(MASK))
    a.valu('v_and_b32', v(EIGHTH + 1), '0x3e003e00', v(MASK + 1))
    a.valu('v_and_b32', v(AS), '0x3e983e98', v(MASK))
    a.valu('v_and_b32', v(AS + 1), '0x3e983e98', v(MASK + 1))
    a.valu('v_and_b32', v(AS + 2), '0x39e039e0', v(MASK))
    a.valu('v_and_b32', v(AS + 3), '0x39e039e0', v(MASK + 1))
    a.valu('v_mov_b32', v(NEGH), '0xbf00bf00')
    a.valu('v_mov_b32', v(NEGH + 1), '0xbf00bf00')
    for i in range(4):
        a.valu('v_mov_b32', v(C1E6 + i), hex(EPS_BITS))
    a.valu('v_bfe_u32', 'v13', V_N, 1, 2)
    for r in range(4):
        a.vcmp('v_cmp_eq_u32', 'vcc', r, 'v13')
        a.valu('v_cndmask_b32', v(PVM + r), 0, 'v16', 'vcc')
    a.valu('v_lshlrev_b32', v(VQ), 4, V_G)
    a.valu('v_add_u32', v(VQ), LDS_Q, v(VQ))

    a.wait(vm=4 * PB)
    stamp()
    a.other('s_barrier')
    nextg = PB
    for u in range(4):
        for h in range(2):
            p = 2 * u + h
            a.emit(Ins(f'ds_read2_b64 {vr(RAW + 4 * p, 4)}, {v(VQ)} offset0:{8*u+h} offset1:{8*u+h}', 'ds', _regs(v(VQ)), _regs(vr(RAW + 4 * p, 4))))
    for tm in range(4):
        for u in range(4):
            a.ds_read('ds_read_b128', vr(OM + 16 * tm + 4 * u, 4), v(RA[u]), offset=LDS_OM + 4096 * tm)
    while nextg < PF:
        group(nextg); nextg += 1
    a.scmp('s_cmp_eq_u32', S_CNT, 0)
    a.branch('s_cbranch_scc1', 'L_noflag')
    a.salu('s_mov_b64', 's[62:63]', 'exec')
    a.salu('s_mov_b64', 'exec', 1)
    a.valu('v_mov_b32', v(T[0]), 1)
    a.salu('s_lshl_b32', S_T0, S_HEAD, 2)
    a.vmem_store('buffer_atomic_add', v(T[0]), None, srd(SRD_DBG), S_T0, flags='sc1')
    a.salu('s_mov_b64', 'exec', 's[62:63]')
    a.label('L_noflag')
    for u in range(4):
        a.valu('v_add_u32', v(RK8[u]), S_KLDS, v(RA[u]))
    for u in range(4):
        a.valu('v_mov_b32', v(RA[u]), v(RK8[u]))
        a.valu('v_add_u32', v(RK8[u]), 8, v(RK8[u]))
    RK = RA

    def cvt(dst, src, tm):
        a.valu('v_cvt_pk_bf16_f32', v(dst + 2 * tm), v(src + 4 * tm), v(src + 4 * tm + 1))
        a.valu('v_cvt_pk_bf16_f32', v(dst + 2 * tm + 1), v(src + 4 * tm + 2), v(src + 4 * tm + 3))

    def front():
        for p in range(8):
            sd = SD + 4 * (p % 3)
            a.mfma('16x16x32', vr(sd, 4), vr(AS, 4), vr(RAW + 4 * p, 4), 0)
            a.valu('v_cvt_pk_bf16_f32', v(KS + 2 * p), v(sd), v(sd + 1))
            a.valu('v_cvt_pk_bf16_f32', v(KS + 2 * p + 1), v(sd + 2), v(sd + 3))
            if p % 2 == 1:
                u = p // 2
                f = vr(KS + 4 * u, 4)
                a.mfma('16x16x32', vr(G, 4), f, f, 0 if u == 0 else vr(G, 4))
                for tm in range(4):
                    a.mfma('16x16x32', vr(D1 + 4 * tm, 4), vr(OM + 16 * tm + 4 * u, 4), f, 0 if u == 0 else vr(D1 + 4 * tm, 4))

    def back(qdst, is_q):
        a.valu('v_cvt_pk_bf16_f32', v(T[0]), v(G), v(G + 1))
        a.valu('v_cvt_pk_bf16_f32', v(T[1]), v(G + 2), v(G + 3))
        a.valu('v_and_b32', v(T[0]), v(T[0]), v(MASK))
        a.valu('v_and_b32', v(T[1]), v(T[1]), v(MASK + 1))
        a.mfma('16x16x16', vr(CQ, 4), vr(NEGH, 2), vr(T[0], 2), 0)
        for tm in range(4):
            cvt(qdst, D1, tm)
        for tm in range(4):
            a.mfma('16x16x16', vr(E + 4 * tm, 4), vr(IDA, 2), vr(qdst + 2 * tm, 2), vr(CQ, 4))
        for tm in range(4):
            cvt(qdst, E, tm)
        for tm in range(4):
            for h in range(2):
                x = qdst + 2 * tm + h
                d0, d1 = D1 + 4 * tm + 2 * h, D1 + 4 * tm + 2 * h + 1
                a.valu('v_lshlrev_b32', v(d0), 16, v(x))
                a.valu('v_and_b32', v(d1), VHI, v(x))
                a.valu('v_mul_f32', v(d0), VLOG2E, v(d0))
                a.valu('v_mul_f32', v(d1), VLOG2E, v(d1))
                a.valu('v_exp_f32', v(d0), v(d0))
                a.valu('v_exp_f32', v(d1), v(d1))
        for tm in range(4):
            cvt(qdst, D1, tm)
        if is_q:
            for tm in range(4):
                a.mfma('16x16x16', vr(E + 4 * tm, 4), vr(EIGHTH, 2), vr(qdst + 2 * tm, 2), vr(C1E6, 4))
            for tm in range(4):
                cvt(qdst, E, tm)

    def fetch(tk):
        nonlocal nextg
        rawregs = [vr(RAW, 32)]
        a.wait_for(rawregs, vm=4 * (PF - 1))
        for u in range(4):
            for h in range(2):
                p = 2 * u + h
                addr = v(RK[u]) if h == 0 else v(RK8[u])
                a.emit(Ins(f'ds_read2st64_b64 {vr(RAW + 4 * p, 4)}, {addr} offset0:{8*tk} offset1:{8*tk}', 'ds', _regs(addr), _regs(vr(RAW + 4 * p, 4))))
        if nextg < 8:
            group(nextg); nextg += 1

    a.begin()
    a.wait_for([vr(RAW, 32), vr(OM, 64)], lgkm=0)
    front()
    fetch(0)
    back(A2, True)
    for i in range(4):
        a.valu('v_mov_b32', v(T[4 + i]), '0x3f803f80')
    a.mfma('16x16x32', vr(CEPS, 4), vr(A2, 4), vr(T[4], 4), 0)
    a.mfma('16x16x32', vr(CEPS, 4), vr(A2 + 4, 4), vr(T[4], 4), vr(CEPS, 4))
    for i in range(8):
        a.valu('v_subrev_u32', v(A2 + i), '0x01800180', v(A2 + i))
    a.valu('v_mov_b32', v(T[2]), hex(EPS_BITS))
    for i in range(4):
        a.valu('v_mul_f32', v(CEPS + i), v(T[2]), v(CEPS + i))
    for tk in range(4):
        stamp()
        a.wait_for([vr(RAW, 32)], lgkm=0)
        front()
        if tk < 3:
            fetch(tk + 1)
        else:
            while nextg < 8:
                group(nextg); nextg += 1
        back(Q, False)
        w2 = W2 + 4 * (tk & 1)
        a.mfma('16x16x32', vr(w2, 4), vr(A2, 4), vr(Q, 4), vr(CEPS, 4))
        a.mfma('16x16x32', vr(w2, 4), vr(A2 + 4, 4), vr(Q + 4, 4), vr(w2, 4))
        a.valu('v_mov_b32_dpp', V_W, v(w2), mods=f'quad_perm:[0,1,2,3] row_mask:{hex(1 << tk)} bank_mask:0xf', dpp=True)
    a.valu('v_cvt_pk_bf16_f32', V_PHI2, V_W, V_W)
    a.valu('v_mov_b32', v(T[1]), V_W)
    a.valu('v_and_b32', v(T[0]), VHI, V_PHI2)
    a.valu('v_sub_f32', v(T[0]), V_W, v(T[0]))
    a.valu('v_cvt_pk_bf16_f32', V_PLO2, v(T[0]), v(T[0]))
    for sh in (8, 4, 2, 1):
        a.valu('v_add_f32_dpp', v(T[1]), v(T[1]), v(T[1]), mods=f'row_ror:{sh} row_mask:0xf bank_mask:0xf', dpp=True)
    a.salu('s_lshl_b32', S_T0, S_WAVE, 4)
    a.salu('s_add_u32', S_T0, S_T0, LDS_DEN)
    a.valu('v_lshl_add_u32', v(T[2]), V_G, 2, S_T0)
    a.ds_write('ds_write_b32', v(T[2]), v(T[1]))
    for t in range(16):
        tmp = T[4 + (t & 3)]
        a.valu('v_mov_b32_dpp', v(tmp), V_PHI2, mods=f'row_newbcast:{t} row_mask:0xf bank_mask:0x3', dpp=True)
        a.valu('v_mov_b32_dpp', v(tmp), V_PLO2, mods=f'row_newbcast:{t} row_mask:0xf bank_mask:0xc', dpp=True)
        for r in range(4):
            a.valu('v_and_b32', v(OM + 4 * t + r), v(tmp), v(PVM + r))
    a.end(VERB)
    stamp()
    a.wait(lgkm=0)
    a.other('s_barrier')
    stamp()
    a.valu('v_mov_b32', 'v70', LDS_DEN)
    DS = 88
    for i in range(8):
        a.ds_read('ds_read_b128', vr(DS + 4 * i, 4), 'v70', offset=16 * i)
    a.salu('s_lshl_b32', S_T0, S_HEAD, 2)
    FLAG = T[5]
    a.vmem_load('buffer_load_dword', v(FLAG), None, srd(SRD_DBG), S_T0, flags='sc1')
    RED_W, RED_R, V_D8, TT, NUM, DEN = 64, 65, 66, 67, 68, 69
    a.salu('s_lshl_b32', S_T0, S_WAVE, 10)
    a.salu('s_add_u32', S_T0, S_T0, LDS_RED)
    a.valu('v_lshl_add_u32', v(RED_W), V_LANE, 4, S_T0)
    a.valu('v_lshrrev_b32', v(V_D8), 5, V_TID)
    a.valu('v_and_b32', v(TT), 7, V_TID)
    a.valu('v_lshl_add_u32', v(V_D8), v(V_D8), 4, v(TT))
    a.valu('v_bfe_u32', v(TT), V_TID, 3, 2)
    a.valu('v_lshlrev_b32', v(TT), 2, v(TT))
    a.valu('v_lshl_add_u32', v(RED_R), v(V_D8), 4, v(TT))
    a.valu('v_add_u32', v(RED_R), LDS_RED, v(RED_R))
    a.valu('v_lshlrev_b32', v(V_D8), 3, V_TID)
    a.wait(lgkm=0)
    for st in (16, 8, 4, 2):
        for i in range(st):
            a.valu('v_add_f32', v(DS + i), v(DS + i), v(DS + i + st))
    a.valu('v_add_f32', v(DEN), v(DS), v(DS + 1))

    for t in range(16):
        a.wait(vm=16 - t)
        if t in (0, 8, 15): stamp()
        a.mfma('16x16x32', vr(D3, 4), vr(VD + 4 * t, 4), vr(OM + 4 * t, 4), 0 if t == 0 else vr(D3, 4))
    a.ds_write('ds_write_b128', v(RED_W), vr(D3, 4))
    a.wait(lgkm=0)
    a.other('s_barrier')
    stamp()
    a.scmp('s_cmp_ge_u32', S_WAVE, 2)
    a.branch('s_cbranch_scc1', 'L_end2')
    for i in range(16):
        a.ds_read('ds_read_b32', v(DS + i), v(RED_R), offset=1024 * (i >> 1) + 128 * (i & 1))
    a.wait(lgkm=0)
    for st in (8, 4, 2):
        for i in range(st):
            a.valu('v_add_f32', v(DS + i), v(DS + i), v(DS + i + st))
    a.valu('v_add_f32', v(NUM), v(DS), v(DS + 1))
    a.scmp('s_cmp_eq_u32', S_SPLIT, 0)
    a.branch('s_cbranch_scc1', 'L_consumer')
    a.valu('v_min_u32', v(D3), -2, v(NUM))
    a.valu('v_min_u32', v(D3 + 1), -2, v(DEN))
    a.vmem_store('buffer_store_dwordx2', vr(D3, 2), v(V_D8), srd(SRD_WS), S_SLOT, flags='sc1')
    a.branch('s_branch', 'L_end2')
    a.label('L_consumer')
    a.salu('s_mov_b32', S_T1, 0)
    a.salu('s_lshl_b32', S_T0, S_HEAD, 2)
    a.wait(vm=0)
    a.label('L_flagloop')
    a.vcmp('v_cmp_gt_u32', 'vcc', 7, v(FLAG))
    a.branch('s_cbranch_vccz', 'L_poll')
    a.salu('s_add_u32', S_T1, S_T1, 1)
    a.scmp('s_cmp_gt_u32', S_T1, 0x40000)
    a.branch('s_cbranch_scc1', 'L_end2')
    a.vmem_load('buffer_load_dword', v(FLAG), None, srd(SRD_DBG), S_T0, flags='sc1')
    a.wait(vm=0)
    a.branch('s_branch', 'L_flagloop')
    a.label('L_poll')
    a.salu('s_mov_b32', S_T1, 0)
    a.label('L_pollloop')
    for j in range(1, 8):
        a.salu('s_add_u32', S_T2, S_SLOT, 1024 * j)
        a.vmem_load('buffer_load_dwordx2', vr(D1 + 2 * j, 2), v(V_D8), srd(SRD_WS), S_T2, flags='sc1')
    a.wait(vm=0)
    a.valu('v_max3_u32', v(TT), v(D1 + 2), v(D1 + 3), v(D1 + 4))
    for k in range(5):
        a.valu('v_max3_u32', v(TT), v(TT), v(D1 + 5 + 2 * k), v(D1 + 6 + 2 * k))
    a.valu('v_max_u32', v(TT), v(TT), v(D1 + 15))
    a.vcmp('v_cmp_eq_u32', 'vcc', -1, v(TT))
    a.branch('s_cbranch_vccz', 'L_done')
    a.salu('s_add_u32', S_T1, S_T1, 1)
    a.scmp('s_cmp_gt_u32', S_T1, 0x40000)
    a.branch('s_cbranch_scc0', 'L_pollloop')
    a.label('L_done')
    for j in range(1, 8):
        a.valu('v_add_f32', v(NUM), v(NUM), v(D1 + 2 * j))
        a.valu('v_add_f32', v(DEN), v(DEN), v(D1 + 2 * j + 1))
    a.valu('v_add_f32', v(DEN), hex(EPS_BITS), v(DEN))
    a.valu('v_rcp_f32', v(TT), v(DEN))
    a.valu('v_mul_f32', v(NUM), v(NUM), v(TT))
    a.valu('v_cvt_pk_bf16_f32', v(NUM), v(NUM), v(NUM))
    a.salu('s_lshl_b32', S_T0, S_HEAD, 8)
    a.valu('v_lshlrev_b32', v(TT), 1, V_TID)
    a.vmem_store('buffer_store_short', v(NUM), v(TT), srd(SRD_OUT), S_T0)
    a.label('L_end2')
    stamp()
    dump_stamps()
    a.label('L_end')
    a.other('s_endpgm')

    hdr = open('standalone__linear_kernel_rfa__decode.s.ref').read().split('\n')
    head_comments = [l for l in hdr if l.startswith(';') and '@launch' not in l and 'Override' not in l and 'grid=ceil' not in l]
    txt = '\n'.join(head_comments) + '\n'
    txt += f'; @launch grid=(256,1,1) block=(512,1,1) lds={LDS_TOTAL}\n'
    txt += '.amdgcn_target "amdgcn-amd-amdhsa--gfx950"\n.text\n'
    txt += f'.globl {KNAME}\n.p2align 8\n.type {KNAME},@function\n{KNAME}:\n'
    txt += a.text()
    txt += f'''.section .rodata,"a"
.p2align 6
.amdhsa_kernel {KNAME}
  .amdhsa_next_free_vgpr 256
  .amdhsa_next_free_sgpr 102
  .amdhsa_accum_offset 256
  .amdhsa_group_segment_fixed_size 0
  .amdhsa_kernarg_size 56
  .amdhsa_user_sgpr_count 2
  .amdhsa_user_sgpr_kernarg_segment_ptr 1
  .amdhsa_system_sgpr_workgroup_id_x 1
  .amdhsa_float_denorm_mode_32 3
.end_amdhsa_kernel
'''
    return txt, a

if __name__ == '__main__':
    out = sys.argv[1]
    opts = {}
    for kv in sys.argv[2:]:
        k, val = kv.split('=')
        opts[k] = int(val, 0)
    txt, a = gen(opts)
    open(out, 'w').write(txt)
    print('instructions', a.count, 'nop states', a.nops)
```

```python
import sys
import numpy as np
from asmlib import SAsm, Ins, _regs

def f32bits(x):
    return int(np.float32(x).view(np.uint32))

KNAME = 'standalone__linear_kernel_rfa__decode_kernel'

def gen(opts):
    NT = opts.get('nt', 1)
    DEPTH = opts.get('depth', 3)
    PRE = opts.get('pre', 2)
    STAMPS = opts.get('stamps', 0)
    VERB = opts.get('verbose', 0)
    SLEEP = opts.get('sleep', 1)
    EPS_BITS = 0x35860000
    a = SAsm()
    nst = [0]
    def stamp(i=None):
        if STAMPS:
            if i is None:
                i = nst[0]
            nst[0] = i + 1
            assert 64 + 2 * i + 1 <= 101
            a.emit(Ins(f's_memrealtime s[{64+2*i}:{65+2*i}]', 'other'))
    def dump_stamps(n):
        if not STAMPS: return
        a.wait(lgkm=0)
        a.salu('s_mov_b64', 'exec', -1)
        a.valu('v_mov_b32', 'v100', 0)
        for i in range(n):
            a.valu('v_writelane_b32', 'v100', f's{64+2*i}', i, rmw=True)
        a.salu('s_getreg_b32', 's52', 'hwreg(HW_REG_XCC_ID)')
        a.valu('v_writelane_b32', 'v100', 's52', 31, rmw=True)
        a.salu('s_lshl_b32', 's52', 's2', 3)
        a.salu('s_add_u32', 's52', 's52', 's50')
        a.salu('s_lshl_b32', 's52', 's52', 7)
        a.salu('s_add_u32', 's52', 's52', 0x80000)
        a.valu('v_lshlrev_b32', 'v101', 2, 'v1')
        a.vcmp('v_cmp_gt_u32', 'vcc', 32, 'v1')
        a.salu('s_and_b64', 'exec', 'exec', 'vcc')
        a.vmem_store('buffer_store_dword', 'v100', 'v101', 's[36:39]', 's52')
        a.salu('s_mov_b64', 'exec', -1)

    LDS_OM = 0
    LDS_K = 16384
    LDS_RED = 16384 + 4 * 32768
    LDS_WX = LDS_RED + 4096
    LDS_DEN = LDS_WX + 4096
    LDS_FLG = LDS_DEN + 64
    LDS_Q = LDS_FLG + 192
    LDS_TOTAL = LDS_Q + 1024

    SRD_K, SRD_V, SRD_OM, SRD_Q, SRD_WS, SRD_DBG, SRD_OUT = 20, 24, 28, 32, 36, 40, 44
    def srd(b): return f's[{b}:{b+3}]'
    S_HEAD, S_SPLIT, S_WAVE, S_KOFF = 's48', 's49', 's50', 's51'
    S_T0, S_T1, S_T2, S_T3 = 's52', 's53', 's54', 's55'
    S_J, S_F = 's56', 's57'
    S_KLDS, S_CNT, S_SLOT = 's59', 's60', 's61'
    def v(i): return f'v{i}'
    def vr(i, n): return f'v[{i}:{i+n-1}]'
    ntf = 'nt' if NT else ''
    V_TID, V_LANE, V_G, V_N = 'v0', 'v1', 'v2', 'v3'

    a.scmp('s_cmp_ge_u32', 's2', 256)
    a.branch('s_cbranch_scc1', 'L_end')
    stamp(0)
    a.salu('s_load_dwordx2', f's[{SRD_OM}:{SRD_OM+1}]', 's[0:1]', 24)
    a.salu('s_load_dwordx2', f's[{SRD_K}:{SRD_K+1}]', 's[0:1]', 8)
    a.salu('s_load_dwordx2', f's[{SRD_Q}:{SRD_Q+1}]', 's[0:1]', 0)
    a.salu('s_load_dwordx2', f's[{SRD_V}:{SRD_V+1}]', 's[0:1]', 16)
    a.salu('s_load_dwordx2', f's[{SRD_WS}:{SRD_WS+1}]', 's[0:1]', 48)
    a.salu('s_load_dwordx2', f's[{SRD_DBG}:{SRD_DBG+1}]', 's[0:1]', 40)
    a.salu('s_load_dwordx2', f's[{SRD_OUT}:{SRD_OUT+1}]', 's[0:1]', 32)
    a.valu('v_lshrrev_b32', 'v13', 6, V_TID)
    a.valu('v_and_b32', V_LANE, 63, V_TID)
    a.valu('v_readfirstlane_b32', S_WAVE, 'v13')
    a.valu('v_lshrrev_b32', V_G, 4, V_LANE)
    a.valu('v_and_b32', V_N, 15, V_LANE)
    DEC = opts.get('dec', 2)
    if DEC == 0:
        a.salu('s_and_b32', S_HEAD, 's2', 31)
    else:
        a.salu('s_and_b32', S_HEAD, 's2', 7)
        a.salu('s_lshl_b32', S_HEAD, S_HEAD, 2)
        a.salu('s_bfe_u32', S_T0, 's2', '0x20003')
        a.salu('s_or_b32', S_HEAD, S_HEAD, S_T0)
    a.salu('s_lshr_b32', S_SPLIT, 's2', 5)
    for b, size in ((SRD_OM, 16384), (SRD_K, 1 << 25), (SRD_Q, 8192), (SRD_V, 1 << 25), (SRD_WS, 1 << 20), (SRD_DBG, 256), (SRD_OUT, 8192)):
        a.salu('s_mov_b32', f's{b+2}', hex(size))
        a.salu('s_mov_b32', f's{b+3}', '0x00020000')
    a.valu('v_xor_b32', 'v14', V_G, V_N)
    a.valu('v_lshlrev_b32', 'v14', 4, 'v14')
    a.salu('s_and_b32', S_J, S_WAVE, 3)
    a.salu('s_mov_b32', 's58', 0)
    a.salu('s_lshl_b32', S_T0, S_J, 15)
    a.salu('s_add_u32', S_KLDS, S_T0, LDS_K)
    a.salu('s_lshl_b32', S_SLOT, S_HEAD, 3)
    a.salu('s_add_u32', S_SLOT, S_SLOT, S_SPLIT)
    a.salu('s_lshl_b32', S_SLOT, S_SLOT, 10)
    a.scmp('s_cmp_ge_u32', S_WAVE, 4)
    a.branch('s_cbranch_scc1', 'L_compute')

    VO = [4, 5, 6, 7]
    V_VV, V_FA, V_S = 'v12', 'v13', 'v15'
    D3, PVM, PX = 16, 20, 24
    B3 = 32
    TT = [48, 49, 50, 51]
    VD = 128
    a.valu('v_lshl_or_b32', v(VO[0]), V_G, 8, 'v14')
    for i in range(1, 4):
        a.valu('v_xor_b32', v(VO[i]), i << 6, v(VO[0]))
    a.valu('v_lshlrev_b32', V_VV, 4, V_LANE)
    a.valu('v_lshlrev_b32', 'v19', 4, V_LANE)
    a.salu('s_lshl_b32', S_KOFF, S_HEAD, 20)
    a.salu('s_lshl_b32', S_T1, S_SPLIT, 17)
    a.salu('s_or_b32', S_KOFF, S_KOFF, S_T1)
    a.salu('s_lshl_b32', S_T2, S_J, 12)
    a.salu('s_or_b32', S_KOFF, S_KOFF, S_T2)
    a.salu('s_lshl_b32', S_T3, S_HEAD, 8)
    a.salu('s_lshl_b32', S_F, S_J, 4)
    a.salu('s_add_u32', S_F, S_F, LDS_FLG)
    a.valu('v_mov_b32', V_FA, S_F)
    a.wait(lgkm=0)
    stamp(1)
    a.salu('s_mov_b32', 'm0', S_T2)
    for i in range(4):
        a.vmem_load('buffer_load_dwordx4', None, v(VO[i]), srd(SRD_OM), S_T2, offset=1024 * i, lds=True)
    a.scmp('s_cmp_lg_u32', S_WAVE, 0)
    a.branch('s_cbranch_scc1', 'L_noq')
    a.salu('s_mov_b32', 'm0', LDS_Q)
    a.vmem_load('buffer_load_dwordx4', None, 'v19', srd(SRD_Q), S_T3, lds=True)
    a.label('L_noq')

    def group(gi):
        if gi < 8:
            a.salu('s_add_u32', S_T0, S_KLDS, 4096 * gi)
            a.salu('s_mov_b32', 'm0', S_T0)
            a.salu('s_add_u32', S_T1, S_KOFF, 16384 * gi)
            for i in range(4):
                a.vmem_load('buffer_load_dwordx4', None, v(VO[i]), srd(SRD_K), S_T1, offset=1024 * i, flags=ntf, lds=True)
        else:
            q4 = gi - 8
            a.salu('s_add_u32', S_T1, S_KOFF, 16384 * q4)
            for t in range(4 * q4, 4 * q4 + 4):
                a.vmem_load('buffer_load_dwordx4', vr(VD + 4 * t, 4), V_VV, srd(SRD_V), S_T1, offset=1024 * (t % 4), flags=ntf)

    def signal(off, val):
        a.salu('s_mov_b64', 'exec', 1)
        a.valu('v_mov_b32', V_S, val)
        a.ds_write('ds_write_b32', V_FA, V_S, offset=off)
        a.salu('s_mov_b64', 'exec', -1)

    S_LAST = 's62'
    nchk = [0]
    def check(issued):
        k = nchk[0]; nchk[0] += 1
        a.scmp('s_cmp_ge_i32', S_LAST, 9)
        a.branch('s_cbranch_scc1', f'L_chk{k}')
        a.salu('s_getreg_b32', S_T2, 'hwreg(HW_REG_IB_STS)')
        a.salu('s_and_b32', S_T3, S_T2, 15)
        a.salu('s_bfe_u32', S_T2, S_T2, hex(22 | (2 << 16)))
        a.salu('s_lshl_b32', S_T2, S_T2, 4)
        a.salu('s_or_b32', S_T3, S_T3, S_T2)
        a.salu('s_sub_i32', S_T3, issued + 4, S_T3)
        a.salu('s_ashr_i32', S_T3, S_T3, 2)
        a.salu('s_min_i32', S_T3, S_T3, 9)
        a.scmp('s_cmp_le_i32', S_T3, S_LAST)
        a.branch('s_cbranch_scc1', f'L_chk{k}')
        a.salu('s_mov_b32', S_LAST, S_T3)
        signal(0, S_LAST)
        a.label(f'L_chk{k}')
    a.salu('s_mov_b32', S_LAST, 0)
    for gi in range(PRE):
        group(gi)
    a.other('s_barrier')
    stamp(2)
    for gi in range(PRE, 16):
        group(gi)
        check(4 * (gi + 1))
        if gi == 7: stamp(3)
    stamp(4)
    a.label('L_drain')
    check(64)
    a.scmp('s_cmp_ge_i32', S_LAST, 9)
    a.branch('s_cbranch_scc0', 'L_drain')
    stamp(5)
    a.valu('v_and_b32', 'v8', 1, V_N)
    a.valu('v_mov_b32', 'v9', '0xffff')
    a.valu('v_mov_b32', 'v10', '0xffff0000')
    a.vcmp('v_cmp_eq_u32', 'vcc', 1, 'v8')
    a.valu('v_cndmask_b32', 'v9', 'v9', 'v10', 'vcc')
    a.valu('v_bfe_u32', 'v8', V_N, 1, 2)
    for r in range(4):
        a.vcmp('v_cmp_eq_u32', 'vcc', r, 'v8')
        a.valu('v_cndmask_b32', v(PVM + r), 0, 'v9', 'vcc')
    a.salu('s_lshl_b32', S_T0, S_J, 10)
    a.salu('s_add_u32', S_T1, S_T0, LDS_WX)
    a.valu('v_lshl_add_u32', 'v10', V_N, 2, V_G)
    a.valu('v_lshl_add_u32', 'v10', 'v10', 3, S_T1)
    a.salu('s_add_u32', S_T1, S_T0, LDS_RED)
    a.valu('v_lshl_add_u32', 'v11', V_LANE, 4, S_T1)
    a.label('L_wpoll')
    a.ds_read('ds_read_b32', 'v8', V_FA, offset=8)
    a.wait(lgkm=0)
    a.valu('v_readfirstlane_b32', S_T0, 'v8')
    a.scmp('s_cmp_lg_u32', S_T0, 0)
    a.branch('s_cbranch_scc1', 'L_wready')
    a.other(f's_sleep {SLEEP}')
    a.salu('s_add_u32', 's58', 's58', 1)
    a.scmp('s_cmp_lt_u32', 's58', 0x80000)
    a.branch('s_cbranch_scc1', 'L_wpoll')
    a.label('L_wready')
    a.ds_read('ds_read_b64', vr(PX, 2), 'v10')
    a.ds_read('ds_read_b64', vr(PX + 2, 2), 'v10', offset=512)
    a.wait(lgkm=0)
    stamp(6)
    def build(t):
        b = B3 + 4 * (t % 4)
        tmp = TT[t % 4]
        ph, pl = PX + 2 * (t // 16), PX + 2 * (t // 16) + 1
        a.valu('v_mov_b32_dpp', v(tmp), v(ph), mods=f'row_newbcast:{t % 16} row_mask:0xf bank_mask:0x3', dpp=True)
        a.valu('v_mov_b32_dpp', v(tmp), v(pl), mods=f'row_newbcast:{t % 16} row_mask:0xf bank_mask:0xc', dpp=True)
        for r in range(4):
            a.valu('v_and_b32', v(b + r), v(tmp), v(PVM + r))
    build(0); build(1)
    for t in range(32):
        if t + 2 < 32:
            build(t + 2)
        a.wait(vm=31 - t)
        if t in (0, 31): stamp()
        a.mfma('16x16x32', vr(D3, 4), vr(VD + 4 * t, 4), vr(B3 + 4 * (t % 4), 4), 0 if t == 0 else vr(D3, 4))
    a.ds_write('ds_write_b128', 'v11', vr(D3, 4))
    a.wait(lgkm=0)
    a.other('s_barrier')
    stamp()
    NL = nst[0]
    a.branch('s_branch', 'L_end_l')

    a.label('L_compute')
    RA = [4, 5, 6, 7]; RK8 = [8, 9, 10, 11]
    V_FA, VQ = 'v12', 'v13'
    WA = [14, 15]
    CEPS, MASK, NEGH, IDA = 16, 20, 22, 24
    VHI, VLOG2E = 'v26', 'v27'
    AS = 28
    A2, Q, CQ = 32, 40, 48
    T = [52, 53, 54, 55]
    W2 = 56
    G = [64, 68]
    SD = 72
    KS = 84
    E = 100
    D1 = [116, 132]
    RAW = 148
    OM = 192
    EIGHTH, C1E6 = 180, 184
    X = [182, 183, 188, 189, 190, 191]

    a.other('s_setprio 2')
    a.scmp('s_cmp_eq_u32', S_WAVE, 4)
    a.salu('s_cselect_b32', S_CNT, S_SPLIT, 0)
    for i in range(4):
        a.valu('v_mov_b32', v(W2 + 4 + i), -1)
    a.valu('v_lshlrev_b32', 'v19', 4, V_LANE)
    for i in range(4):
        a.valu('v_mov_b32', v(W2 + i), 0)
    a.salu('s_lshl_b32', S_F, S_J, 4)
    a.salu('s_add_u32', S_F, S_F, LDS_FLG)
    a.valu('v_mov_b32', V_FA, S_F)
    a.salu('s_mov_b64', 'exec', 1)
    a.ds_write('ds_write_b128', V_FA, vr(W2, 4))
    a.salu('s_mov_b64', 'exec', -1)
    a.wait(lgkm=0)
    a.scmp('s_cmp_eq_u32', S_CNT, 0)
    a.branch('s_cbranch_scc1', 'L_noclear')
    a.vmem_store('buffer_store_dwordx4', vr(W2 + 4, 4), 'v19', srd(SRD_WS), S_SLOT, flags='sc1')
    a.label('L_noclear')
    a.other('s_barrier')
    stamp(1)
    a.valu('v_lshl_or_b32', v(RA[0]), V_N, 8, 'v14')
    for i in range(1, 4):
        a.valu('v_xor_b32', v(RA[i]), i << 6, v(RA[0]))
    a.valu('v_mov_b32', VHI, '0xffff0000')
    a.valu('v_mov_b32', VLOG2E, hex(f32bits(1.4426950408889634)))
    a.valu('v_lshrrev_b32', v(T[0]), 2, V_N)
    a.valu('v_and_b32', v(T[1]), 3, V_N)
    a.valu('v_and_b32', v(T[2]), 1, V_N)
    a.valu('v_mov_b32', v(T[3]), '0xffff')
    a.vcmp('v_cmp_eq_u32', 'vcc', 1, v(T[2]))
    a.valu('v_cndmask_b32', v(T[3]), v(T[3]), VHI, 'vcc')
    a.vcmp('v_cmp_eq_u32', 'vcc', V_G, v(T[0]))
    a.valu('v_cndmask_b32', v(T[3]), 0, v(T[3]), 'vcc')
    a.vcmp('v_cmp_gt_u32', 'vcc', 2, v(T[1]))
    a.valu('v_cndmask_b32', v(MASK), 0, v(T[3]), 'vcc')
    a.valu('v_cndmask_b32', v(MASK + 1), v(T[3]), 0, 'vcc')
    a.valu('v_and_b32', v(IDA), '0x3f803f80', v(MASK))
    a.valu('v_and_b32', v(IDA + 1), '0x3f803f80', v(MASK + 1))
    a.valu('v_and_b32', v(EIGHTH), '0x3e003e00', v(MASK))
    a.valu('v_and_b32', v(EIGHTH + 1), '0x3e003e00', v(MASK + 1))
    a.valu('v_and_b32', v(AS), '0x3e983e98', v(MASK))
    a.valu('v_and_b32', v(AS + 1), '0x3e983e98', v(MASK + 1))
    a.valu('v_and_b32', v(AS + 2), '0x39e039e0', v(MASK))
    a.valu('v_and_b32', v(AS + 3), '0x39e039e0', v(MASK + 1))
    a.valu('v_mov_b32', v(NEGH), '0xbf00bf00')
    a.valu('v_mov_b32', v(NEGH + 1), '0xbf00bf00')
    for i in range(4):
        a.valu('v_mov_b32', v(C1E6 + i), hex(EPS_BITS))
    a.valu('v_lshlrev_b32', VQ, 4, V_G)
    a.valu('v_add_u32', VQ, LDS_Q, VQ)
    a.valu('v_and_b32', v(X[0]), 3, V_LANE)
    a.valu('v_lshlrev_b32', v(X[0]), 4, v(X[0]))
    a.valu('v_add_u32', v(X[0]), LDS_FLG, v(X[0]))
    for u in range(4):
        a.valu('v_add_u32', v(RK8[u]), S_KLDS, v(RA[u]))
    a.label('L_ompoll')
    a.ds_read('ds_read_b32', v(X[1]), v(X[0]))
    a.wait(lgkm=0)
    a.vcmp('v_cmp_eq_u32', 'vcc', 0, v(X[1]))
    a.branch('s_cbranch_vccz', 'L_omready')
    a.other(f's_sleep {SLEEP}')
    a.salu('s_add_u32', 's58', 's58', 1)
    a.scmp('s_cmp_lt_u32', 's58', 0x80000)
    a.branch('s_cbranch_scc1', 'L_ompoll')
    a.label('L_omready')
    stamp(2)
    for u in range(4):
        for h in range(2):
            p = 2 * u + h
            a.emit(Ins(f'ds_read2_b64 {vr(RAW + 4 * p, 4)}, {VQ} offset0:{8*u+h} offset1:{8*u+h}', 'ds', _regs(VQ), _regs(vr(RAW + 4 * p, 4))))
    for tm in range(4):
        for u in range(4):
            a.ds_read('ds_read_b128', vr(OM + 16 * tm + 4 * u, 4), v(RA[u]), offset=LDS_OM + 4096 * tm)
    for u in range(4):
        a.valu('v_mov_b32', v(RA[u]), v(RK8[u]))
        a.valu('v_add_u32', v(RK8[u]), 8, v(RK8[u]))
    RK = RA

    def cvt(dst, src, tm):
        a.valu('v_cvt_pk_bf16_f32', v(dst + 2 * tm), v(src + 4 * tm), v(src + 4 * tm + 1))
        a.valu('v_cvt_pk_bf16_f32', v(dst + 2 * tm + 1), v(src + 4 * tm + 2), v(src + 4 * tm + 3))

    def front(b):
        g, d1 = G[b], D1[b]
        for p in range(8):
            sd = SD + 4 * (p % 3)
            a.mfma('16x16x32', vr(sd, 4), vr(AS, 4), vr(RAW + 4 * p, 4), 0)
            a.valu('v_cvt_pk_bf16_f32', v(KS + 2 * p), v(sd), v(sd + 1))
            a.valu('v_cvt_pk_bf16_f32', v(KS + 2 * p + 1), v(sd + 2), v(sd + 3))
            if p % 2 == 1:
                u = p // 2
                f = vr(KS + 4 * u, 4)
                a.mfma('16x16x32', vr(g, 4), f, f, 0 if u == 0 else vr(g, 4))
                for tm in range(4):
                    a.mfma('16x16x32', vr(d1 + 4 * tm, 4), vr(OM + 16 * tm + 4 * u, 4), f, 0 if u == 0 else vr(d1 + 4 * tm, 4))

    def back(b, qdst, is_q):
        g, d1 = G[b], D1[b]
        a.valu('v_cvt_pk_bf16_f32', v(T[0]), v(g), v(g + 1))
        a.valu('v_cvt_pk_bf16_f32', v(T[1]), v(g + 2), v(g + 3))
        a.valu('v_and_b32', v(T[0]), v(T[0]), v(MASK))
        a.valu('v_and_b32', v(T[1]), v(T[1]), v(MASK + 1))
        a.mfma('16x16x16', vr(CQ, 4), vr(NEGH, 2), vr(T[0], 2), 0)
        for tm in range(4):
            cvt(qdst, d1, tm)
        for tm in range(4):
            a.mfma('16x16x16', vr(E + 4 * tm, 4), vr(IDA, 2), vr(qdst + 2 * tm, 2), vr(CQ, 4))
        for tm in range(4):
            cvt(qdst, E, tm)
        for tm in range(4):
            for h in range(2):
                x = qdst + 2 * tm + h
                d0, dd1 = d1 + 4 * tm + 2 * h, d1 + 4 * tm + 2 * h + 1
                a.valu('v_lshlrev_b32', v(d0), 16, v(x))
                a.valu('v_and_b32', v(dd1), VHI, v(x))
                a.valu('v_mul_f32', v(d0), VLOG2E, v(d0))
                a.valu('v_mul_f32', v(dd1), VLOG2E, v(dd1))
                a.valu('v_exp_f32', v(d0), v(d0))
                a.valu('v_exp_f32', v(dd1), v(dd1))
        for tm in range(4):
            cvt(qdst, d1, tm)
        if is_q:
            for tm in range(4):
                a.mfma('16x16x16', vr(E + 4 * tm, 4), vr(EIGHTH, 2), vr(qdst + 2 * tm, 2), vr(C1E6, 4))
            for tm in range(4):
                cvt(qdst, E, tm)
            for i in range(4):
                a.valu('v_mov_b32', v(E + i), '0x3f803f80')
            a.mfma('16x16x32', vr(CEPS, 4), vr(A2, 4), vr(E, 4), 0)
            a.mfma('16x16x32', vr(CEPS, 4), vr(A2 + 4, 4), vr(E, 4), vr(CEPS, 4))
            for i in range(8):
                a.valu('v_subrev_u32', v(A2 + i), '0x01800180', v(A2 + i))
            a.valu('v_mov_b32', v(T[2]), hex(EPS_BITS))
            for i in range(4):
                a.valu('v_mul_f32', v(CEPS + i), v(T[2]), v(CEPS + i))

    def wfin(tk):
        w2 = W2 + 4 * (tk & 1)
        a.mfma('16x16x32', vr(w2, 4), vr(A2, 4), vr(Q, 4), vr(CEPS, 4))
        a.mfma('16x16x32', vr(w2, 4), vr(A2 + 4, 4), vr(Q + 4, 4), vr(w2, 4))
        a.valu('v_mov_b32_dpp', v(WA[tk // 4]), v(w2), mods=f'quad_perm:[0,1,2,3] row_mask:{hex(1 << (tk % 4))} bank_mask:0xf', dpp=True)

    def kpoll_read(tk):
        a.label(f'L_kpoll{tk}')
        a.ds_read('ds_read_b32', v(X[1]), V_FA)
        a.wait(lgkm=0)
        a.valu('v_readfirstlane_b32', S_T0, v(X[1]))
        a.scmp('s_cmp_gt_u32', S_T0, tk + 1)
        a.branch('s_cbranch_scc1', f'L_kready{tk}')
        a.other(f's_sleep {SLEEP}')
        a.salu('s_add_u32', 's58', 's58', 1)
        a.scmp('s_cmp_lt_u32', 's58', 0x80000)
        a.branch('s_cbranch_scc1', f'L_kpoll{tk}')
        a.label(f'L_kready{tk}')
        for u in range(4):
            for h in range(2):
                p = 2 * u + h
                addr = v(RK[u]) if h == 0 else v(RK8[u])
                a.emit(Ins(f'ds_read2st64_b64 {vr(RAW + 4 * p, 4)}, {addr} offset0:{8*tk} offset1:{8*tk}', 'ds', _regs(addr), _regs(vr(RAW + 4 * p, 4))))

    a.begin()
    a.wait_for([vr(RAW, 32), vr(OM, 64)], lgkm=0)
    front(1)
    a.end(VERB)
    stamp(3)
    for tk in range(8):
        kpoll_read(tk)
        if tk in (0, 1, 4, 7): stamp()
        a.begin()
        if tk == 0:
            back(1, A2, True)
        else:
            back((tk - 1) & 1, Q, False)
            wfin(tk - 1)
        a.wait_for([vr(RAW, 32)], lgkm=0)
        front(tk & 1)
        a.end(VERB)
        if tk == 0:
            a.scmp('s_cmp_eq_u32', S_CNT, 0)
            a.branch('s_cbranch_scc1', 'L_noflag')
            a.wait(vm=0)
            a.salu('s_mov_b64', 'exec', 1)
            a.valu('v_mov_b32', v(X[1]), 1)
            a.salu('s_lshl_b32', S_T0, S_HEAD, 2)
            a.vmem_store('buffer_atomic_add', v(X[1]), None, srd(SRD_DBG), S_T0, flags='sc1')
            a.salu('s_mov_b64', 'exec', -1)
            a.label('L_noflag')
    a.begin()
    back(1, Q, False)
    wfin(7)
    for h in range(2):
        a.valu('v_cvt_pk_bf16_f32', v(E + 2 * h), v(WA[h]), v(WA[h]))
        a.valu('v_and_b32', v(T[h]), VHI, v(E + 2 * h))
        a.valu('v_sub_f32', v(T[h]), v(WA[h]), v(T[h]))
        a.valu('v_cvt_pk_bf16_f32', v(E + 2 * h + 1), v(T[h]), v(T[h]))
    a.valu('v_add_f32', v(T[2]), v(WA[0]), v(WA[1]))
    for sh in (8, 4, 2, 1):
        a.valu('v_add_f32_dpp', v(T[2]), v(T[2]), v(T[2]), mods=f'row_ror:{sh} row_mask:0xf bank_mask:0xf', dpp=True)
    a.salu('s_lshl_b32', S_T0, S_J, 10)
    a.salu('s_add_u32', S_T0, S_T0, LDS_WX)
    a.valu('v_lshl_add_u32', v(X[0]), V_LANE, 3, S_T0)
    a.ds_write('ds_write_b64', v(X[0]), vr(E, 2))
    a.ds_write('ds_write_b64', v(X[0]), vr(E + 2, 2), offset=512)
    a.salu('s_lshl_b32', S_T1, S_J, 4)
    a.salu('s_add_u32', S_T1, S_T1, LDS_DEN)
    a.valu('v_lshl_add_u32', v(T[3]), V_G, 2, S_T1)
    a.ds_write('ds_write_b32', v(T[3]), v(T[2]))
    a.end(VERB)
    a.wait(lgkm=0)
    a.salu('s_mov_b64', 'exec', 1)
    a.valu('v_mov_b32', v(X[1]), 1)
    a.ds_write('ds_write_b32', V_FA, v(X[1]), offset=8)
    a.salu('s_mov_b64', 'exec', -1)
    stamp()
    a.scmp('s_cmp_ge_u32', S_WAVE, 6)
    a.branch('s_cbranch_scc1', 'L_idle')
    V_D, RED_R, V_D8, NUM, DEN, FLAG, TT2 = 4, 5, 6, 7, 8, 9, 10
    DS = 116
    a.valu('v_subrev_u32', v(V_D), 256, V_TID)
    a.valu('v_lshrrev_b32', v(V_D8), 5, v(V_D))
    a.valu('v_and_b32', v(TT2), 7, v(V_D))
    a.valu('v_lshl_add_u32', v(V_D8), v(V_D8), 4, v(TT2))
    a.valu('v_bfe_u32', v(TT2), v(V_D), 3, 2)
    a.valu('v_lshlrev_b32', v(TT2), 2, v(TT2))
    a.valu('v_lshl_add_u32', v(RED_R), v(V_D8), 4, v(TT2))
    a.valu('v_add_u32', v(RED_R), LDS_RED, v(RED_R))
    a.valu('v_lshlrev_b32', v(V_D8), 3, v(V_D))
    a.valu('v_and_b32', v(X[0]), 3, V_LANE)
    a.valu('v_lshlrev_b32', v(X[0]), 4, v(X[0]))
    a.valu('v_add_u32', v(X[0]), LDS_FLG, v(X[0]))
    a.label('L_denpoll')
    a.ds_read('ds_read_b32', v(X[1]), v(X[0]), offset=8)
    a.wait(lgkm=0)
    a.vcmp('v_cmp_ne_u32', 'vcc', 1, v(X[1]))
    a.branch('s_cbranch_vccz', 'L_denready')
    a.other(f's_sleep {SLEEP}')
    a.salu('s_add_u32', 's58', 's58', 1)
    a.scmp('s_cmp_lt_u32', 's58', 0x80000)
    a.branch('s_cbranch_scc1', 'L_denpoll')
    a.label('L_denready')
    a.valu('v_mov_b32', v(X[0]), LDS_DEN)
    for i in range(4):
        a.ds_read('ds_read_b128', vr(DS + 4 * i, 4), v(X[0]), offset=16 * i)
    a.wait(lgkm=0)
    for st in (8, 4, 2):
        for i in range(st):
            a.valu('v_add_f32', v(DS + i), v(DS + i), v(DS + i + st))
    a.valu('v_add_f32', v(DEN), v(DS), v(DS + 1))
    a.scmp('s_cmp_lg_u32', S_SPLIT, 0)
    a.branch('s_cbranch_scc1', 'L_b3')
    a.salu('s_mov_b32', S_T1, 0)
    a.salu('s_lshl_b32', S_T0, S_HEAD, 2)
    a.other('s_setprio 3')
    a.label('L_flagloop')
    a.vmem_load('buffer_load_dword', v(FLAG), None, srd(SRD_DBG), S_T0, flags='sc1')
    a.wait(vm=0)
    a.vcmp('v_cmp_gt_u32', 'vcc', 7, v(FLAG))
    a.branch('s_cbranch_vccz', 'L_b3')
    a.salu('s_add_u32', S_T1, S_T1, 1)
    a.scmp('s_cmp_gt_u32', S_T1, 0x40000)
    a.branch('s_cbranch_scc0', 'L_flagloop')
    a.label('L_b3')
    a.other('s_barrier')
    stamp()
    for i in range(8):
        a.ds_read('ds_read_b32', v(DS + i), v(RED_R), offset=1024 * (i >> 1) + 128 * (i & 1))
    a.wait(lgkm=0)
    for st in (4, 2):
        for i in range(st):
            a.valu('v_add_f32', v(DS + i), v(DS + i), v(DS + i + st))
    a.valu('v_add_f32', v(NUM), v(DS), v(DS + 1))
    a.scmp('s_cmp_eq_u32', S_SPLIT, 0)
    a.branch('s_cbranch_scc1', 'L_consumer')
    a.valu('v_min_u32', v(DS), -2, v(NUM))
    a.valu('v_min_u32', v(DS + 1), -2, v(DEN))
    a.vmem_store('buffer_store_dwordx2', vr(DS, 2), v(V_D8), srd(SRD_WS), S_SLOT, flags='sc1')
    a.branch('s_branch', 'L_end_c')
    a.label('L_consumer')
    a.salu('s_mov_b32', S_T1, 0)
    a.label('L_pollloop')
    for j in range(1, 8):
        a.salu('s_add_u32', S_T2, S_SLOT, 1024 * j)
        a.vmem_load('buffer_load_dwordx2', vr(DS + 2 * j, 2), v(V_D8), srd(SRD_WS), S_T2, flags='sc1')
    a.wait(vm=0)
    a.valu('v_max3_u32', v(TT2), v(DS + 2), v(DS + 3), v(DS + 4))
    for k in range(5):
        a.valu('v_max3_u32', v(TT2), v(TT2), v(DS + 5 + 2 * k), v(DS + 6 + 2 * k))
    a.valu('v_max_u32', v(TT2), v(TT2), v(DS + 15))
    a.vcmp('v_cmp_eq_u32', 'vcc', -1, v(TT2))
    a.branch('s_cbranch_vccz', 'L_done')
    a.salu('s_add_u32', S_T1, S_T1, 1)
    a.scmp('s_cmp_gt_u32', S_T1, 0x40000)
    a.branch('s_cbranch_scc0', 'L_pollloop')
    a.label('L_done')
    for j in range(1, 8):
        a.valu('v_add_f32', v(NUM), v(NUM), v(DS + 2 * j))
        a.valu('v_add_f32', v(DEN), v(DEN), v(DS + 2 * j + 1))
    a.valu('v_add_f32', v(DEN), hex(EPS_BITS), v(DEN))
    a.valu('v_rcp_f32', v(TT2), v(DEN))
    a.valu('v_mul_f32', v(NUM), v(NUM), v(TT2))
    a.valu('v_cvt_pk_bf16_f32', v(NUM), v(NUM), v(NUM))
    a.salu('s_lshl_b32', S_T0, S_HEAD, 8)
    a.valu('v_lshlrev_b32', v(TT2), 1, v(V_D))
    a.vmem_store('buffer_store_short', v(NUM), v(TT2), srd(SRD_OUT), S_T0)
    a.branch('s_branch', 'L_end_c')
    a.label('L_idle')
    a.other('s_barrier')
    stamp(nst[0] - 1)
    a.label('L_end_c')
    stamp()
    a.label('L_end_l')
    dump_stamps(max(NL, nst[0]))
    a.label('L_end')
    a.other('s_endpgm')

    hdr = open('standalone__linear_kernel_rfa__decode.s.ref').read().split('\n')
    head_comments = [l for l in hdr if l.startswith(';') and '@launch' not in l and 'Override' not in l and 'grid=ceil' not in l]
    txt = '\n'.join(head_comments) + '\n'
    txt += f'; @launch grid=(256,1,1) block=(512,1,1) lds={LDS_TOTAL}\n'
    txt += '.amdgcn_target "amdgcn-amd-amdhsa--gfx950"\n.text\n'
    txt += f'.globl {KNAME}\n.p2align 8\n.type {KNAME},@function\n{KNAME}:\n'
    txt += a.text()
    txt += f'''.section .rodata,"a"
.p2align 6
.amdhsa_kernel {KNAME}
  .amdhsa_next_free_vgpr 256
  .amdhsa_next_free_sgpr 102
  .amdhsa_accum_offset 256
  .amdhsa_group_segment_fixed_size 0
  .amdhsa_kernarg_size 56
  .amdhsa_user_sgpr_count 2
  .amdhsa_user_sgpr_kernarg_segment_ptr 1
  .amdhsa_system_sgpr_workgroup_id_x 1
  .amdhsa_float_denorm_mode_32 3
.end_amdhsa_kernel
'''
    return txt, a

if __name__ == '__main__':
    out = sys.argv[1]
    opts = {}
    for kv in sys.argv[2:]:
        k, val = kv.split('=')
        opts[k] = int(val, 0)
    txt, a = gen(opts)
    open(out, 'w').write(txt)
    print('instructions', a.count, 'nop states', a.nops)
```

```python
import sys
import numpy as np
from asmlib import SAsm, Ins, _regs

def f32bits(x):
    return int(np.float32(x).view(np.uint32))

ARRS = ['j0,j1,g0,g1,g2,s0,s1,s2', 'j0,j1,s0,g0,s1,g1,s2,g2', 'j0,j1,s0,g0,g1,g2,s1,s2', 's0,j0,j1,g0,g1,g2,s1,s2', 'g0,g1,g2,j0,j1,s0,s1,s2']
KNAME = 'standalone__linear_kernel_rfa__decode_kernel'

def gen(opts):
    NT = opts.get('nt', 1)
    DEPTH = opts.get('depth', 3)
    PRE = opts.get('pre', 2)
    STAMPS = opts.get('stamps', 0)
    VERB = opts.get('verbose', 0)
    SLEEP = opts.get('sleep', 1)
    EPS_BITS = 0x35860000
    a = SAsm()
    nst = [0]
    def stamp(i=None):
        if STAMPS:
            if i is None:
                i = nst[0]
            nst[0] = i + 1
            assert 64 + 2 * i + 1 <= 101
            a.emit(Ins(f's_memrealtime s[{64+2*i}:{65+2*i}]', 'other'))
    def dump_stamps(n):
        if not STAMPS: return
        a.wait(lgkm=0)
        a.salu('s_mov_b64', 'exec', -1)
        a.valu('v_mov_b32', 'v100', 0)
        for i in range(n):
            a.valu('v_writelane_b32', 'v100', f's{64+2*i}', i, rmw=True)
        a.salu('s_getreg_b32', 's52', 'hwreg(HW_REG_XCC_ID)')
        a.valu('v_writelane_b32', 'v100', 's52', 31, rmw=True)
        a.salu('s_lshl_b32', 's52', 's2', 3)
        a.salu('s_add_u32', 's52', 's52', 's50')
        a.salu('s_lshl_b32', 's52', 's52', 7)
        a.salu('s_add_u32', 's52', 's52', 0x80000)
        a.valu('v_lshlrev_b32', 'v101', 2, 'v1')
        a.vcmp('v_cmp_gt_u32', 'vcc', 32, 'v1')
        a.salu('s_and_b64', 'exec', 'exec', 'vcc')
        a.vmem_store('buffer_store_dword', 'v100', 'v101', 's[36:39]', 's52')
        a.salu('s_mov_b64', 'exec', -1)

    LDS_OM = 0
    LDS_K = 16384
    LDS_RED = 16384 + 4 * 32768
    LDS_WX = LDS_RED + 4096
    LDS_DEN = LDS_WX + 4096
    LDS_FLG = LDS_DEN + 64
    LDS_Q = LDS_FLG + 192
    LDS_TOTAL = LDS_Q + 1024

    SRD_K, SRD_V, SRD_OM, SRD_Q, SRD_WS, SRD_DBG, SRD_OUT = 20, 24, 28, 32, 36, 40, 44
    def srd(b): return f's[{b}:{b+3}]'
    S_HEAD, S_SPLIT, S_WAVE, S_KOFF = 's48', 's49', 's50', 's51'
    S_T0, S_T1, S_T2, S_T3 = 's52', 's53', 's54', 's55'
    S_J, S_F = 's56', 's57'
    S_KLDS, S_CNT, S_SLOT = 's59', 's60', 's61'
    def v(i): return f'v{i}'
    def vr(i, n): return f'v[{i}:{i+n-1}]'
    ntf = 'nt' if NT else ''
    V_TID, V_LANE, V_G, V_N = 'v0', 'v1', 'v2', 'v3'

    a.scmp('s_cmp_ge_u32', 's2', 256)
    a.branch('s_cbranch_scc1', 'L_end')
    if STAMPS:
        for i in range(66, 102, 2):
            a.salu('s_mov_b64', f's[{i}:{i+1}]', 0)
    stamp(0)
    a.salu('s_load_dwordx2', f's[{SRD_OM}:{SRD_OM+1}]', 's[0:1]', 24)
    a.salu('s_load_dwordx2', f's[{SRD_K}:{SRD_K+1}]', 's[0:1]', 8)
    a.salu('s_load_dwordx2', f's[{SRD_Q}:{SRD_Q+1}]', 's[0:1]', 0)
    a.salu('s_load_dwordx2', f's[{SRD_V}:{SRD_V+1}]', 's[0:1]', 16)
    a.salu('s_load_dwordx2', f's[{SRD_WS}:{SRD_WS+1}]', 's[0:1]', 48)
    a.salu('s_load_dwordx2', f's[{SRD_DBG}:{SRD_DBG+1}]', 's[0:1]', 40)
    a.salu('s_load_dwordx2', f's[{SRD_OUT}:{SRD_OUT+1}]', 's[0:1]', 32)
    a.valu('v_lshrrev_b32', 'v13', 6, V_TID)
    a.valu('v_and_b32', V_LANE, 63, V_TID)
    a.valu('v_readfirstlane_b32', S_WAVE, 'v13')
    a.valu('v_lshrrev_b32', V_G, 4, V_LANE)
    a.valu('v_and_b32', V_N, 15, V_LANE)
    DEC = opts.get('dec', 2)
    if DEC == 0:
        a.salu('s_and_b32', S_HEAD, 's2', 31)
    else:
        a.salu('s_and_b32', S_HEAD, 's2', 7)
        a.salu('s_lshl_b32', S_HEAD, S_HEAD, 2)
        a.salu('s_bfe_u32', S_T0, 's2', '0x20003')
        a.salu('s_or_b32', S_HEAD, S_HEAD, S_T0)
    a.salu('s_lshr_b32', S_SPLIT, 's2', 5)
    for b, size in ((SRD_OM, 16384), (SRD_K, 1 << 25), (SRD_Q, 8192), (SRD_V, 1 << 25), (SRD_WS, 1 << 20), (SRD_DBG, 256), (SRD_OUT, 8192)):
        a.salu('s_mov_b32', f's{b+2}', hex(size))
        a.salu('s_mov_b32', f's{b+3}', '0x00020000')
    a.valu('v_xor_b32', 'v14', V_G, V_N)
    a.valu('v_lshlrev_b32', 'v14', 4, 'v14')
    a.salu('s_and_b32', S_J, S_WAVE, 3)
    a.salu('s_mov_b32', 's58', 0)
    a.salu('s_lshl_b32', S_T0, S_J, 15)
    a.salu('s_add_u32', S_KLDS, S_T0, LDS_K)
    a.salu('s_lshl_b32', S_SLOT, S_HEAD, 3)
    a.salu('s_add_u32', S_SLOT, S_SLOT, S_SPLIT)
    a.salu('s_lshl_b32', S_SLOT, S_SLOT, 10)
    a.scmp('s_cmp_ge_u32', S_WAVE, 4)
    a.branch('s_cbranch_scc1', 'L_compute')

    VO = [4, 5, 6, 7]
    V_VV, V_FA, V_S = 'v12', 'v13', 'v15'
    D3, PVM, PX = 16, 20, 24
    B3 = 32
    TT = [48, 49, 50, 51]
    VD = 128
    a.valu('v_lshl_or_b32', v(VO[0]), V_G, 8, 'v14')
    for i in range(1, 4):
        a.valu('v_xor_b32', v(VO[i]), i << 6, v(VO[0]))
    a.valu('v_lshlrev_b32', V_VV, 4, V_LANE)
    a.valu('v_lshlrev_b32', 'v19', 4, V_LANE)
    ARR = ARRS[opts.get('arr', 0)].split(',')
    a.salu('s_lshl_b32', S_KOFF, S_HEAD, 20)
    for pos, tk in enumerate(ARR):
        if tk[0] in 'sj':
            src = S_SPLIT if tk[0] == 's' else S_J
            a.salu('s_bfe_u32', S_T1, src, hex(int(tk[1]) | (1 << 16)))
            a.salu('s_lshl_b32', S_T1, S_T1, 12 + pos)
            a.salu('s_or_b32', S_KOFF, S_KOFF, S_T1)
    def gplace(g):
        x = 0
        for pos, tk in enumerate(ARR):
            if tk[0] == 'g' and (g >> int(tk[1])) & 1: x |= 1 << (12 + pos)
        return x
    a.salu('s_lshl_b32', S_T2, S_J, 12)
    a.salu('s_lshl_b32', S_T3, S_HEAD, 8)
    a.salu('s_lshl_b32', S_F, S_J, 4)
    a.salu('s_add_u32', S_F, S_F, LDS_FLG)
    a.valu('v_mov_b32', V_FA, S_F)
    a.wait(lgkm=0)
    stamp(1)
    a.salu('s_mov_b32', 'm0', S_T2)
    for i in range(4):
        if not opts.get('noom', 0):
            a.vmem_load('buffer_load_dwordx4', None, v(VO[i]), srd(SRD_OM), S_T2, offset=1024 * i, lds=True)
    a.scmp('s_cmp_lg_u32', S_WAVE, 0)
    a.branch('s_cbranch_scc1', 'L_noq')
    a.salu('s_mov_b32', 'm0', LDS_Q)
    a.vmem_load('buffer_load_dwordx4', None, 'v19', srd(SRD_Q), S_T3, lds=True)
    a.label('L_noq')

    def group(gi):
        if gi < 8:
            a.salu('s_add_u32', S_T0, S_KLDS, 4096 * gi)
            a.salu('s_mov_b32', 'm0', S_T0)
            a.salu('s_add_u32', S_T1, S_KOFF, gplace(gi))
            for i in range(4):
                a.vmem_load('buffer_load_dwordx4', None, v(VO[i]), srd(SRD_K), S_T1, offset=1024 * i, flags=ntf, lds=True)
        else:
            q4 = gi - 8
            a.salu('s_add_u32', S_T1, S_KOFF, gplace(q4))
            for t in range(4 * q4, 4 * q4 + 4):
                a.vmem_load('buffer_load_dwordx4', vr(VD + 4 * t, 4), V_VV, srd(SRD_V), S_T1, offset=1024 * (t % 4), flags=ntf)

    def signal(off, val):
        a.salu('s_mov_b64', 'exec', 1)
        a.valu('v_mov_b32', V_S, val)
        a.ds_write('ds_write_b32', V_FA, V_S, offset=off)
        a.salu('s_mov_b64', 'exec', -1)

    S_LAST = 's62'
    nchk = [0]
    def check(issued):
        k = nchk[0]; nchk[0] += 1
        if opts.get('nochk', 0) and issued < 64:
            return
        a.scmp('s_cmp_ge_i32', S_LAST, 9)
        a.branch('s_cbranch_scc1', f'L_chk{k}')
        a.salu('s_getreg_b32', S_T2, 'hwreg(HW_REG_IB_STS)')
        a.salu('s_and_b32', S_T3, S_T2, 15)
        a.salu('s_bfe_u32', S_T2, S_T2, hex(22 | (2 << 16)))
        a.salu('s_lshl_b32', S_T2, S_T2, 4)
        a.salu('s_or_b32', S_T3, S_T3, S_T2)
        a.salu('s_sub_i32', S_T3, issued + 4, S_T3)
        a.salu('s_ashr_i32', S_T3, S_T3, 2)
        a.salu('s_min_i32', S_T3, S_T3, 9)
        a.scmp('s_cmp_le_i32', S_T3, S_LAST)
        a.branch('s_cbranch_scc1', f'L_chk{k}')
        a.salu('s_mov_b32', S_LAST, S_T3)
        signal(0, S_LAST)
        a.label(f'L_chk{k}')
    a.salu('s_mov_b32', S_LAST, 0)
    for gi in range(PRE):
        group(gi)
    a.other('s_barrier')
    stamp(2)
    for gi in range(PRE, 16):
        group(gi)
        check(4 * (gi + 1))
        if gi == 7: stamp(3)
    stamp(4)
    a.label('L_drain')
    check(64)
    a.scmp('s_cmp_ge_i32', S_LAST, 9)
    a.branch('s_cbranch_scc0', 'L_drain')
    stamp(5)
    a.valu('v_and_b32', 'v8', 1, V_N)
    a.valu('v_mov_b32', 'v9', '0xffff')
    a.valu('v_mov_b32', 'v10', '0xffff0000')
    a.vcmp('v_cmp_eq_u32', 'vcc', 1, 'v8')
    a.valu('v_cndmask_b32', 'v9', 'v9', 'v10', 'vcc')
    a.valu('v_bfe_u32', 'v8', V_N, 1, 2)
    for r in range(4):
        a.vcmp('v_cmp_eq_u32', 'vcc', r, 'v8')
        a.valu('v_cndmask_b32', v(PVM + r), 0, 'v9', 'vcc')
    a.salu('s_lshl_b32', S_T0, S_J, 10)
    a.salu('s_add_u32', S_T1, S_T0, LDS_WX)
    a.valu('v_lshl_add_u32', 'v10', V_N, 2, V_G)
    a.valu('v_lshl_add_u32', 'v10', 'v10', 3, S_T1)
    a.salu('s_add_u32', S_T1, S_T0, LDS_RED)
    a.valu('v_lshl_add_u32', 'v11', V_LANE, 4, S_T1)
    a.label('L_wpoll')
    a.ds_read('ds_read_b32', 'v8', V_FA, offset=8)
    a.wait(lgkm=0)
    a.valu('v_readfirstlane_b32', S_T0, 'v8')
    a.scmp('s_cmp_lg_u32', S_T0, 0)
    a.branch('s_cbranch_scc1', 'L_wready')
    a.other(f's_sleep {SLEEP}')
    a.salu('s_add_u32', 's58', 's58', 1)
    a.scmp('s_cmp_lt_u32', 's58', 0x80000)
    a.branch('s_cbranch_scc1', 'L_wpoll')
    a.label('L_wready')
    a.ds_read('ds_read_b64', vr(PX, 2), 'v10')
    a.ds_read('ds_read_b64', vr(PX + 2, 2), 'v10', offset=512)
    a.wait(lgkm=0)
    stamp(6)
    def build(t):
        b = B3 + 4 * (t % 4)
        tmp = TT[t % 4]
        ph, pl = PX + 2 * (t // 16), PX + 2 * (t // 16) + 1
        a.valu('v_mov_b32_dpp', v(tmp), v(ph), mods=f'row_newbcast:{t % 16} row_mask:0xf bank_mask:0x3', dpp=True)
        a.valu('v_mov_b32_dpp', v(tmp), v(pl), mods=f'row_newbcast:{t % 16} row_mask:0xf bank_mask:0xc', dpp=True)
        for r in range(4):
            a.valu('v_and_b32', v(b + r), v(tmp), v(PVM + r))
    build(0); build(1)
    for t in range(32):
        if t + 2 < 32:
            build(t + 2)
        a.wait(vm=31 - t)
        if t in (0, 31): stamp()
        a.mfma('16x16x32', vr(D3, 4), vr(VD + 4 * t, 4), vr(B3 + 4 * (t % 4), 4), 0 if t == 0 else vr(D3, 4))
    a.ds_write('ds_write_b128', 'v11', vr(D3, 4))
    a.wait(lgkm=0)
    a.other('s_barrier')
    stamp()
    NL = nst[0]
    a.branch('s_branch', 'L_end_l')

    a.label('L_compute')
    RA = [4, 5, 6, 7]; RK8 = [8, 9, 10, 11]
    V_FA, VQ = 'v12', 'v13'
    WA = [14, 15]
    CEPS, MASK, NEGH, IDA = 16, 20, 22, 24
    VHI, VLOG2E = 'v26', 'v27'
    AS = 28
    A2, Q, CQ = 32, 40, 48
    T = [52, 53, 54, 55]
    W2 = 56
    G = [64, 68]
    SD = 72
    KS = 84
    E = 100
    D1 = [116, 132]
    RAW = 148
    OM = 192
    EIGHTH, C1E6 = 180, 184
    X = [182, 183, 188, 189, 190, 191]

    a.other('s_setprio 2')
    a.scmp('s_cmp_eq_u32', S_WAVE, 4)
    a.salu('s_cselect_b32', S_CNT, S_SPLIT, 0)
    for i in range(4):
        a.valu('v_mov_b32', v(W2 + 4 + i), -1)
    a.valu('v_lshlrev_b32', 'v19', 4, V_LANE)
    for i in range(4):
        a.valu('v_mov_b32', v(W2 + i), 0)
    a.salu('s_lshl_b32', S_F, S_J, 4)
    a.salu('s_add_u32', S_F, S_F, LDS_FLG)
    a.valu('v_mov_b32', V_FA, S_F)
    a.salu('s_mov_b64', 'exec', 1)
    a.ds_write('ds_write_b128', V_FA, vr(W2, 4))
    a.salu('s_mov_b64', 'exec', -1)
    a.wait(lgkm=0)
    a.scmp('s_cmp_eq_u32', S_CNT, 0)
    a.branch('s_cbranch_scc1', 'L_noclear')
    a.vmem_store('buffer_store_dwordx4', vr(W2 + 4, 4), 'v19', srd(SRD_WS), S_SLOT, flags='sc1')
    a.label('L_noclear')
    a.other('s_barrier')
    stamp(1)
    if opts.get('nocompute', 0):
        a.salu('s_mov_b64', 'exec', 1)
        a.valu('v_mov_b32', v(X[1]), 1)
        a.ds_write('ds_write_b32', V_FA, v(X[1]), offset=8)
        a.salu('s_mov_b64', 'exec', -1)
        a.wait(lgkm=0)
        nst[0] = 9
        a.branch('s_branch', 'L_idle')
    a.valu('v_lshl_or_b32', v(RA[0]), V_N, 8, 'v14')
    for i in range(1, 4):
        a.valu('v_xor_b32', v(RA[i]), i << 6, v(RA[0]))
    a.valu('v_mov_b32', VHI, '0xffff0000')
    a.valu('v_mov_b32', VLOG2E, hex(f32bits(1.4426950408889634)))
    a.valu('v_lshrrev_b32', v(T[0]), 2, V_N)
    a.valu('v_and_b32', v(T[1]), 3, V_N)
    a.valu('v_and_b32', v(T[2]), 1, V_N)
    a.valu('v_mov_b32', v(T[3]), '0xffff')
    a.vcmp('v_cmp_eq_u32', 'vcc', 1, v(T[2]))
    a.valu('v_cndmask_b32', v(T[3]), v(T[3]), VHI, 'vcc')
    a.vcmp('v_cmp_eq_u32', 'vcc', V_G, v(T[0]))
    a.valu('v_cndmask_b32', v(T[3]), 0, v(T[3]), 'vcc')
    a.vcmp('v_cmp_gt_u32', 'vcc', 2, v(T[1]))
    a.valu('v_cndmask_b32', v(MASK), 0, v(T[3]), 'vcc')
    a.valu('v_cndmask_b32', v(MASK + 1), v(T[3]), 0, 'vcc')
    a.valu('v_and_b32', v(IDA), '0x3f803f80', v(MASK))
    a.valu('v_and_b32', v(IDA + 1), '0x3f803f80', v(MASK + 1))
    a.valu('v_and_b32', v(EIGHTH), '0x3e003e00', v(MASK))
    a.valu('v_and_b32', v(EIGHTH + 1), '0x3e003e00', v(MASK + 1))
    a.valu('v_and_b32', v(AS), '0x3e983e98', v(MASK))
    a.valu('v_and_b32', v(AS + 1), '0x3e983e98', v(MASK + 1))
    a.valu('v_and_b32', v(AS + 2), '0x39e039e0', v(MASK))
    a.valu('v_and_b32', v(AS + 3), '0x39e039e0', v(MASK + 1))
    a.valu('v_mov_b32', v(NEGH), '0xbf00bf00')
    a.valu('v_mov_b32', v(NEGH + 1), '0xbf00bf00')
    for i in range(4):
        a.valu('v_mov_b32', v(C1E6 + i), hex(EPS_BITS))
    a.valu('v_lshlrev_b32', VQ, 4, V_G)
    a.valu('v_add_u32', VQ, LDS_Q, VQ)
    a.valu('v_and_b32', v(X[0]), 3, V_LANE)
    a.valu('v_lshlrev_b32', v(X[0]), 4, v(X[0]))
    a.valu('v_add_u32', v(X[0]), LDS_FLG, v(X[0]))
    for u in range(4):
        a.valu('v_add_u32', v(RK8[u]), S_KLDS, v(RA[u]))
    a.label('L_ompoll')
    a.ds_read('ds_read_b32', v(X[1]), v(X[0]))
    a.wait(lgkm=0)
    a.vcmp('v_cmp_eq_u32', 'vcc', 0, v(X[1]))
    a.branch('s_cbranch_vccz', 'L_omready')
    a.other(f's_sleep {SLEEP}')
    a.salu('s_add_u32', 's58', 's58', 1)
    a.scmp('s_cmp_lt_u32', 's58', 0x80000)
    a.branch('s_cbranch_scc1', 'L_ompoll')
    a.label('L_omready')
    stamp(2)
    for u in range(4):
        for h in range(2):
            p = 2 * u + h
            a.emit(Ins(f'ds_read2_b64 {vr(RAW + 4 * p, 4)}, {VQ} offset0:{8*u+h} offset1:{8*u+h}', 'ds', _regs(VQ), _regs(vr(RAW + 4 * p, 4))))
    for tm in range(4):
        for u in range(4):
            a.ds_read('ds_read_b128', vr(OM + 16 * tm + 4 * u, 4), v(RA[u]), offset=LDS_OM + 4096 * tm)
    for u in range(4):
        a.valu('v_mov_b32', v(RA[u]), v(RK8[u]))
        a.valu('v_add_u32', v(RK8[u]), 8, v(RK8[u]))
    RK = RA

    def cvt(dst, src, tm):
        a.valu('v_cvt_pk_bf16_f32', v(dst + 2 * tm), v(src + 4 * tm), v(src + 4 * tm + 1))
        a.valu('v_cvt_pk_bf16_f32', v(dst + 2 * tm + 1), v(src + 4 * tm + 2), v(src + 4 * tm + 3))

    def front(b):
        g, d1 = G[b], D1[b]
        for p in range(8):
            sd = SD + 4 * (p % 3)
            a.mfma('16x16x32', vr(sd, 4), vr(AS, 4), vr(RAW + 4 * p, 4), 0)
            a.valu('v_cvt_pk_bf16_f32', v(KS + 2 * p), v(sd), v(sd + 1))
            a.valu('v_cvt_pk_bf16_f32', v(KS + 2 * p + 1), v(sd + 2), v(sd + 3))
            if p % 2 == 1:
                u = p // 2
                f = vr(KS + 4 * u, 4)
                a.mfma('16x16x32', vr(g, 4), f, f, 0 if u == 0 else vr(g, 4))
                for tm in range(4):
                    a.mfma('16x16x32', vr(d1 + 4 * tm, 4), vr(OM + 16 * tm + 4 * u, 4), f, 0 if u == 0 else vr(d1 + 4 * tm, 4))

    def back(b, qdst, is_q):
        g, d1 = G[b], D1[b]
        a.valu('v_cvt_pk_bf16_f32', v(T[0]), v(g), v(g + 1))
        a.valu('v_cvt_pk_bf16_f32', v(T[1]), v(g + 2), v(g + 3))
        a.valu('v_and_b32', v(T[0]), v(T[0]), v(MASK))
        a.valu('v_and_b32', v(T[1]), v(T[1]), v(MASK + 1))
        a.mfma('16x16x16', vr(CQ, 4), vr(NEGH, 2), vr(T[0], 2), 0)
        for tm in range(4):
            cvt(qdst, d1, tm)
        for tm in range(4):
            a.mfma('16x16x16', vr(E + 4 * tm, 4), vr(IDA, 2), vr(qdst + 2 * tm, 2), vr(CQ, 4))
        for tm in range(4):
            cvt(qdst, E, tm)
        for tm in range(4):
            for h in range(2):
                x = qdst + 2 * tm + h
                d0, dd1 = d1 + 4 * tm + 2 * h, d1 + 4 * tm + 2 * h + 1
                a.valu('v_lshlrev_b32', v(d0), 16, v(x))
                a.valu('v_and_b32', v(dd1), VHI, v(x))
                a.valu('v_mul_f32', v(d0), VLOG2E, v(d0))
                a.valu('v_mul_f32', v(dd1), VLOG2E, v(dd1))
                a.valu('v_exp_f32', v(d0), v(d0))
                a.valu('v_exp_f32', v(dd1), v(dd1))
        for tm in range(4):
            cvt(qdst, d1, tm)
        if is_q:
            for tm in range(4):
                a.mfma('16x16x16', vr(E + 4 * tm, 4), vr(EIGHTH, 2), vr(qdst + 2 * tm, 2), vr(C1E6, 4))
            for tm in range(4):
                cvt(qdst, E, tm)
            for i in range(4):
                a.valu('v_mov_b32', v(E + i), '0x3f803f80')
            a.mfma('16x16x32', vr(CEPS, 4), vr(A2, 4), vr(E, 4), 0)
            a.mfma('16x16x32', vr(CEPS, 4), vr(A2 + 4, 4), vr(E, 4), vr(CEPS, 4))
            for i in range(8):
                a.valu('v_subrev_u32', v(A2 + i), '0x01800180', v(A2 + i))
            a.valu('v_mov_b32', v(T[2]), hex(EPS_BITS))
            for i in range(4):
                a.valu('v_mul_f32', v(CEPS + i), v(T[2]), v(CEPS + i))

    def wfin(tk):
        w2 = W2 + 4 * (tk & 1)
        a.mfma('16x16x32', vr(w2, 4), vr(A2, 4), vr(Q, 4), vr(CEPS, 4))
        a.mfma('16x16x32', vr(w2, 4), vr(A2 + 4, 4), vr(Q + 4, 4), vr(w2, 4))
        a.valu('v_mov_b32_dpp', v(WA[tk // 4]), v(w2), mods=f'quad_perm:[0,1,2,3] row_mask:{hex(1 << (tk % 4))} bank_mask:0xf', dpp=True)

    def kpoll_read(tk):
        a.label(f'L_kpoll{tk}')
        a.ds_read('ds_read_b32', v(X[1]), V_FA)
        a.wait(lgkm=0)
        a.valu('v_readfirstlane_b32', S_T0, v(X[1]))
        a.scmp('s_cmp_gt_u32', S_T0, tk + 1)
        a.branch('s_cbranch_scc1', f'L_kready{tk}')
        a.other(f's_sleep {SLEEP}')
        a.salu('s_add_u32', 's58', 's58', 1)
        a.scmp('s_cmp_lt_u32', 's58', 0x80000)
        a.branch('s_cbranch_scc1', f'L_kpoll{tk}')
        a.label(f'L_kready{tk}')
        for u in range(4):
            for h in range(2):
                p = 2 * u + h
                addr = v(RK[u]) if h == 0 else v(RK8[u])
                a.emit(Ins(f'ds_read2st64_b64 {vr(RAW + 4 * p, 4)}, {addr} offset0:{8*tk} offset1:{8*tk}', 'ds', _regs(addr), _regs(vr(RAW + 4 * p, 4))))

    a.begin()
    a.wait_for([vr(RAW, 32), vr(OM, 64)], lgkm=0)
    front(1)
    a.end(VERB)
    stamp(3)
    for tk in range(8):
        kpoll_read(tk)
        if tk in (0, 1, 4, 7): stamp()
        a.begin()
        if tk == 0:
            back(1, A2, True)
        else:
            back((tk - 1) & 1, Q, False)
            wfin(tk - 1)
        a.wait_for([vr(RAW, 32)], lgkm=0)
        front(tk & 1)
        a.end(VERB)
        if tk == 0:
            a.scmp('s_cmp_eq_u32', S_CNT, 0)
            a.branch('s_cbranch_scc1', 'L_noflag')
            a.wait(vm=0)
            a.salu('s_mov_b64', 'exec', 1)
            a.valu('v_mov_b32', v(X[1]), 1)
            a.salu('s_lshl_b32', S_T0, S_HEAD, 2)
            a.vmem_store('buffer_atomic_add', v(X[1]), None, srd(SRD_DBG), S_T0, flags='sc1')
            a.salu('s_mov_b64', 'exec', -1)
            a.label('L_noflag')
    a.begin()
    back(1, Q, False)
    wfin(7)
    for h in range(2):
        a.valu('v_cvt_pk_bf16_f32', v(E + 2 * h), v(WA[h]), v(WA[h]))
        a.valu('v_and_b32', v(T[h]), VHI, v(E + 2 * h))
        a.valu('v_sub_f32', v(T[h]), v(WA[h]), v(T[h]))
        a.valu('v_cvt_pk_bf16_f32', v(E + 2 * h + 1), v(T[h]), v(T[h]))
    a.valu('v_add_f32', v(T[2]), v(WA[0]), v(WA[1]))
    for sh in (8, 4, 2, 1):
        a.valu('v_add_f32_dpp', v(T[2]), v(T[2]), v(T[2]), mods=f'row_ror:{sh} row_mask:0xf bank_mask:0xf', dpp=True)
    a.salu('s_lshl_b32', S_T0, S_J, 10)
    a.salu('s_add_u32', S_T0, S_T0, LDS_WX)
    a.valu('v_lshl_add_u32', v(X[0]), V_LANE, 3, S_T0)
    a.ds_write('ds_write_b64', v(X[0]), vr(E, 2))
    a.ds_write('ds_write_b64', v(X[0]), vr(E + 2, 2), offset=512)
    a.salu('s_lshl_b32', S_T1, S_J, 4)
    a.salu('s_add_u32', S_T1, S_T1, LDS_DEN)
    a.valu('v_lshl_add_u32', v(T[3]), V_G, 2, S_T1)
    a.ds_write('ds_write_b32', v(T[3]), v(T[2]))
    a.end(VERB)
    a.wait(lgkm=0)
    a.salu('s_mov_b64', 'exec', 1)
    a.valu('v_mov_b32', v(X[1]), 1)
    a.ds_write('ds_write_b32', V_FA, v(X[1]), offset=8)
    a.salu('s_mov_b64', 'exec', -1)
    stamp()
    a.scmp('s_cmp_ge_u32', S_WAVE, 6)
    a.branch('s_cbranch_scc1', 'L_idle')
    V_D, RED_R, V_D8, NUM, DEN, FLAG, TT2 = 4, 5, 6, 7, 8, 9, 10
    DS = 116
    a.valu('v_subrev_u32', v(V_D), 256, V_TID)
    a.valu('v_lshrrev_b32', v(V_D8), 5, v(V_D))
    a.valu('v_and_b32', v(TT2), 7, v(V_D))
    a.valu('v_lshl_add_u32', v(V_D8), v(V_D8), 4, v(TT2))
    a.valu('v_bfe_u32', v(TT2), v(V_D), 3, 2)
    a.valu('v_lshlrev_b32', v(TT2), 2, v(TT2))
    a.valu('v_lshl_add_u32', v(RED_R), v(V_D8), 4, v(TT2))
    a.valu('v_add_u32', v(RED_R), LDS_RED, v(RED_R))
    a.valu('v_lshlrev_b32', v(V_D8), 3, v(V_D))
    a.valu('v_and_b32', v(X[0]), 3, V_LANE)
    a.valu('v_lshlrev_b32', v(X[0]), 4, v(X[0]))
    a.valu('v_add_u32', v(X[0]), LDS_FLG, v(X[0]))
    a.label('L_denpoll')
    a.ds_read('ds_read_b32', v(X[1]), v(X[0]), offset=8)
    a.wait(lgkm=0)
    a.vcmp('v_cmp_ne_u32', 'vcc', 1, v(X[1]))
    a.branch('s_cbranch_vccz', 'L_denready')
    a.other(f's_sleep {SLEEP}')
    a.salu('s_add_u32', 's58', 's58', 1)
    a.scmp('s_cmp_lt_u32', 's58', 0x80000)
    a.branch('s_cbranch_scc1', 'L_denpoll')
    a.label('L_denready')
    a.valu('v_mov_b32', v(X[0]), LDS_DEN)
    for i in range(4):
        a.ds_read('ds_read_b128', vr(DS + 4 * i, 4), v(X[0]), offset=16 * i)
    a.wait(lgkm=0)
    for st in (8, 4, 2):
        for i in range(st):
            a.valu('v_add_f32', v(DS + i), v(DS + i), v(DS + i + st))
    a.valu('v_add_f32', v(DEN), v(DS), v(DS + 1))
    a.scmp('s_cmp_lg_u32', S_SPLIT, 0)
    a.branch('s_cbranch_scc1', 'L_b3')
    a.salu('s_mov_b32', S_T1, 0)
    a.salu('s_lshl_b32', S_T0, S_HEAD, 2)
    a.other('s_setprio 3')
    a.label('L_flagloop')
    a.vmem_load('buffer_load_dword', v(FLAG), None, srd(SRD_DBG), S_T0, flags='sc1')
    a.wait(vm=0)
    a.vcmp('v_cmp_gt_u32', 'vcc', 7, v(FLAG))
    a.branch('s_cbranch_vccz', 'L_b3')
    a.salu('s_add_u32', S_T1, S_T1, 1)
    a.scmp('s_cmp_gt_u32', S_T1, 0x40000)
    a.branch('s_cbranch_scc0', 'L_flagloop')
    a.label('L_b3')
    a.other('s_barrier')
    stamp()
    for i in range(8):
        a.ds_read('ds_read_b32', v(DS + i), v(RED_R), offset=1024 * (i >> 1) + 128 * (i & 1))
    a.wait(lgkm=0)
    for st in (4, 2):
        for i in range(st):
            a.valu('v_add_f32', v(DS + i), v(DS + i), v(DS + i + st))
    a.valu('v_add_f32', v(NUM), v(DS), v(DS + 1))
    a.scmp('s_cmp_eq_u32', S_SPLIT, 0)
    a.branch('s_cbranch_scc1', 'L_consumer')
    a.valu('v_min_u32', v(DS), -2, v(NUM))
    a.valu('v_min_u32', v(DS + 1), -2, v(DEN))
    a.vmem_store('buffer_store_dwordx2', vr(DS, 2), v(V_D8), srd(SRD_WS), S_SLOT, flags='sc1')
    a.branch('s_branch', 'L_end_c')
    a.label('L_consumer')
    a.salu('s_mov_b32', S_T1, 0)
    a.label('L_pollloop')
    for j in range(1, 8):
        a.salu('s_add_u32', S_T2, S_SLOT, 1024 * j)
        a.vmem_load('buffer_load_dwordx2', vr(DS + 2 * j, 2), v(V_D8), srd(SRD_WS), S_T2, flags='sc1')
    a.wait(vm=0)
    a.valu('v_max3_u32', v(TT2), v(DS + 2), v(DS + 3), v(DS + 4))
    for k in range(5):
        a.valu('v_max3_u32', v(TT2), v(TT2), v(DS + 5 + 2 * k), v(DS + 6 + 2 * k))
    a.valu('v_max_u32', v(TT2), v(TT2), v(DS + 15))
    a.vcmp('v_cmp_eq_u32', 'vcc', -1, v(TT2))
    a.branch('s_cbranch_vccz', 'L_done')
    a.salu('s_add_u32', S_T1, S_T1, 1)
    a.scmp('s_cmp_gt_u32', S_T1, 0x40000)
    a.branch('s_cbranch_scc0', 'L_pollloop')
    a.label('L_done')
    for j in range(1, 8):
        a.valu('v_add_f32', v(NUM), v(NUM), v(DS + 2 * j))
        a.valu('v_add_f32', v(DEN), v(DEN), v(DS + 2 * j + 1))
    a.valu('v_add_f32', v(DEN), hex(EPS_BITS), v(DEN))
    a.valu('v_rcp_f32', v(TT2), v(DEN))
    a.valu('v_mul_f32', v(NUM), v(NUM), v(TT2))
    a.valu('v_cvt_pk_bf16_f32', v(NUM), v(NUM), v(NUM))
    a.salu('s_lshl_b32', S_T0, S_HEAD, 8)
    a.valu('v_lshlrev_b32', v(TT2), 1, v(V_D))
    a.vmem_store('buffer_store_short', v(NUM), v(TT2), srd(SRD_OUT), S_T0)
    a.branch('s_branch', 'L_end_c')
    a.label('L_idle')
    a.other('s_barrier')
    stamp(nst[0] - 1)
    a.label('L_end_c')
    stamp()
    a.label('L_end_l')
    dump_stamps(max(NL, nst[0]))
    a.label('L_end')
    a.other('s_endpgm')

    hdr = open('standalone__linear_kernel_rfa__decode.s.ref').read().split('\n')
    head_comments = [l for l in hdr if l.startswith(';') and '@launch' not in l and 'Override' not in l and 'grid=ceil' not in l]
    txt = '\n'.join(head_comments) + '\n'
    txt += f'; @launch grid=(256,1,1) block=(512,1,1) lds={LDS_TOTAL}\n'
    txt += '.amdgcn_target "amdgcn-amd-amdhsa--gfx950"\n.text\n'
    txt += f'.globl {KNAME}\n.p2align 8\n.type {KNAME},@function\n{KNAME}:\n'
    txt += a.text()
    txt += f'''.section .rodata,"a"
.p2align 6
.amdhsa_kernel {KNAME}
  .amdhsa_next_free_vgpr 256
  .amdhsa_next_free_sgpr 102
  .amdhsa_accum_offset 256
  .amdhsa_group_segment_fixed_size 0
  .amdhsa_kernarg_size 56
  .amdhsa_user_sgpr_count 2
  .amdhsa_user_sgpr_kernarg_segment_ptr 1
  .amdhsa_system_sgpr_workgroup_id_x 1
  .amdhsa_float_denorm_mode_32 3
.end_amdhsa_kernel
'''
    return txt, a

if __name__ == '__main__':
    out = sys.argv[1]
    opts = {}
    for kv in sys.argv[2:]:
        k, val = kv.split('=')
        opts[k] = int(val, 0)
    txt, a = gen(opts)
    open(out, 'w').write(txt)
    print('instructions', a.count, 'nop states', a.nops)
```

```python
import sys
import numpy as np
from asmlib import SAsm, Ins, _regs

def f32bits(x):
    return int(np.float32(x).view(np.uint32))

ARRS = ['j0,j1,g0,g1,g2,s0,s1,s2', 'j0,j1,s0,g0,s1,g1,s2,g2', 'j0,j1,s0,g0,g1,g2,s1,s2', 's0,j0,j1,g0,g1,g2,s1,s2', 'g0,g1,g2,j0,j1,s0,s1,s2']
KNAME = 'standalone__linear_kernel_rfa__decode_kernel'

def gen(opts):
    NT = opts.get('nt', 1)
    DEPTH = opts.get('depth', 3)
    PRE = opts.get('pre', 2)
    STAMPS = opts.get('stamps', 0)
    VERB = opts.get('verbose', 0)
    SLEEP = opts.get('sleep', 1)
    EPS_BITS = 0x35860000
    a = SAsm()
    nst = [0]
    def stamp(i=None):
        if STAMPS:
            if i is None:
                i = nst[0]
            nst[0] = i + 1
            assert 64 + 2 * i + 1 <= 101
            a.emit(Ins(f's_memrealtime s[{64+2*i}:{65+2*i}]', 'other'))
    def dump_stamps(n):
        if not STAMPS: return
        a.wait(lgkm=0)
        a.salu('s_mov_b64', 'exec', -1)
        a.valu('v_mov_b32', 'v100', 0)
        for i in range(n):
            a.valu('v_writelane_b32', 'v100', f's{64+2*i}', i, rmw=True)
        a.salu('s_getreg_b32', 's52', 'hwreg(HW_REG_XCC_ID)')
        a.valu('v_writelane_b32', 'v100', 's52', 31, rmw=True)
        a.salu('s_lshl_b32', 's52', 's2', 3)
        a.salu('s_add_u32', 's52', 's52', 's50')
        a.salu('s_lshl_b32', 's52', 's52', 7)
        a.salu('s_add_u32', 's52', 's52', 0x80000)
        a.valu('v_lshlrev_b32', 'v101', 2, 'v1')
        a.vcmp('v_cmp_gt_u32', 'vcc', 32, 'v1')
        a.salu('s_and_b64', 'exec', 'exec', 'vcc')
        a.vmem_store('buffer_store_dword', 'v100', 'v101', 's[36:39]', 's52')
        a.salu('s_mov_b64', 'exec', -1)

    LDS_OM = 0
    LDS_K = 16384
    LDS_RED = 16384 + 4 * 32768
    LDS_WX = LDS_RED + 4096
    LDS_DEN = LDS_WX + 4096
    LDS_FLG = LDS_DEN + 64
    LDS_Q = LDS_FLG + 192
    LDS_TOTAL = LDS_Q + 1024

    SRD_K, SRD_V, SRD_OM, SRD_Q, SRD_WS, SRD_DBG, SRD_OUT = 20, 24, 28, 32, 36, 40, 44
    def srd(b): return f's[{b}:{b+3}]'
    S_HEAD, S_SPLIT, S_WAVE, S_KOFF = 's48', 's49', 's50', 's51'
    S_T0, S_T1, S_T2, S_T3 = 's52', 's53', 's54', 's55'
    S_J, S_F = 's56', 's57'
    S_KLDS, S_CNT, S_SLOT = 's59', 's60', 's61'
    def v(i): return f'v{i}'
    def vr(i, n): return f'v[{i}:{i+n-1}]'
    ntf = 'nt' if NT else ''
    V_TID, V_LANE, V_G, V_N = 'v0', 'v1', 'v2', 'v3'

    a.scmp('s_cmp_ge_u32', 's2', 256)
    a.branch('s_cbranch_scc1', 'L_end')
    if STAMPS:
        for i in range(66, 102, 2):
            a.salu('s_mov_b64', f's[{i}:{i+1}]', 0)
    stamp(0)
    a.salu('s_load_dwordx2', f's[{SRD_OM}:{SRD_OM+1}]', 's[0:1]', 24)
    a.salu('s_load_dwordx2', f's[{SRD_K}:{SRD_K+1}]', 's[0:1]', 8)
    a.salu('s_load_dwordx2', f's[{SRD_Q}:{SRD_Q+1}]', 's[0:1]', 0)
    a.salu('s_load_dwordx2', f's[{SRD_V}:{SRD_V+1}]', 's[0:1]', 16)
    a.salu('s_load_dwordx2', f's[{SRD_WS}:{SRD_WS+1}]', 's[0:1]', 48)
    a.salu('s_load_dwordx2', f's[{SRD_DBG}:{SRD_DBG+1}]', 's[0:1]', 40)
    a.salu('s_load_dwordx2', f's[{SRD_OUT}:{SRD_OUT+1}]', 's[0:1]', 32)
    a.valu('v_lshrrev_b32', 'v13', 6, V_TID)
    a.valu('v_and_b32', V_LANE, 63, V_TID)
    a.valu('v_readfirstlane_b32', S_WAVE, 'v13')
    a.valu('v_lshrrev_b32', V_G, 4, V_LANE)
    a.valu('v_and_b32', V_N, 15, V_LANE)
    DEC = opts.get('dec', 2)
    if DEC == 0:
        a.salu('s_and_b32', S_HEAD, 's2', 31)
    else:
        a.salu('s_and_b32', S_HEAD, 's2', 7)
        a.salu('s_lshl_b32', S_HEAD, S_HEAD, 2)
        a.salu('s_bfe_u32', S_T0, 's2', '0x20003')
        a.salu('s_or_b32', S_HEAD, S_HEAD, S_T0)
    a.salu('s_lshr_b32', S_SPLIT, 's2', 5)
    for b, size in ((SRD_OM, 16384), (SRD_K, 1 << 25), (SRD_Q, 8192), (SRD_V, 1 << 25), (SRD_WS, 1 << 20), (SRD_DBG, 256), (SRD_OUT, 8192)):
        a.salu('s_mov_b32', f's{b+2}', hex(size))
        a.salu('s_mov_b32', f's{b+3}', '0x00020000')
    a.valu('v_xor_b32', 'v14', V_G, V_N)
    a.valu('v_lshlrev_b32', 'v14', 4, 'v14')
    a.salu('s_and_b32', S_J, S_WAVE, 3)
    a.salu('s_mov_b32', 's58', 0)
    a.salu('s_lshl_b32', S_T0, S_J, 15)
    a.salu('s_add_u32', S_KLDS, S_T0, LDS_K)
    a.salu('s_lshl_b32', S_SLOT, S_HEAD, 3)
    a.salu('s_add_u32', S_SLOT, S_SLOT, S_SPLIT)
    a.salu('s_lshl_b32', S_SLOT, S_SLOT, 10)
    a.scmp('s_cmp_ge_u32', S_WAVE, 4)
    a.branch('s_cbranch_scc1', 'L_compute')

    VO = [4, 5, 6, 7]
    V_VV, V_FA, V_S = 'v12', 'v13', 'v15'
    D3, PVM, PX = 16, 20, 24
    B3 = 32
    TT = [48, 49, 50, 51]
    VD = 128
    a.valu('v_lshl_or_b32', v(VO[0]), V_G, 8, 'v14')
    for i in range(1, 4):
        a.valu('v_xor_b32', v(VO[i]), i << 6, v(VO[0]))
    a.valu('v_lshlrev_b32', V_VV, 4, V_LANE)
    a.valu('v_lshlrev_b32', 'v19', 4, V_LANE)
    ARR = ARRS[opts.get('arr', 0)].split(',')
    a.salu('s_lshl_b32', S_KOFF, S_HEAD, 20)
    for pos, tk in enumerate(ARR):
        if tk[0] in 'sj':
            src = S_SPLIT if tk[0] == 's' else S_J
            a.salu('s_bfe_u32', S_T1, src, hex(int(tk[1]) | (1 << 16)))
            a.salu('s_lshl_b32', S_T1, S_T1, 12 + pos)
            a.salu('s_or_b32', S_KOFF, S_KOFF, S_T1)
    def gplace(g):
        x = 0
        for pos, tk in enumerate(ARR):
            if tk[0] == 'g' and (g >> int(tk[1])) & 1: x |= 1 << (12 + pos)
        return x
    a.salu('s_lshl_b32', S_T2, S_J, 12)
    a.salu('s_lshl_b32', S_T3, S_HEAD, 8)
    a.salu('s_lshl_b32', S_F, S_J, 4)
    a.salu('s_add_u32', S_F, S_F, LDS_FLG)
    a.valu('v_mov_b32', V_FA, S_F)
    a.wait(lgkm=0)
    stamp(1)
    a.salu('s_mov_b32', 'm0', S_T2)
    for i in range(4):
        if not opts.get('noom', 0):
            a.vmem_load('buffer_load_dwordx4', None, v(VO[i]), srd(SRD_OM), S_T2, offset=1024 * i, lds=True)
    a.scmp('s_cmp_lg_u32', S_WAVE, 0)
    a.branch('s_cbranch_scc1', 'L_noq')
    a.salu('s_mov_b32', 'm0', LDS_Q)
    a.vmem_load('buffer_load_dwordx4', None, 'v19', srd(SRD_Q), S_T3, lds=True)
    a.label('L_noq')

    def group(gi):
        if gi < 8:
            a.salu('s_add_u32', S_T0, S_KLDS, 4096 * gi)
            a.salu('s_mov_b32', 'm0', S_T0)
            a.salu('s_add_u32', S_T1, S_KOFF, gplace(gi))
            for i in range(4):
                a.vmem_load('buffer_load_dwordx4', None, v(VO[i]), srd(SRD_K), S_T1, offset=1024 * i, flags=ntf, lds=True)
        else:
            q4 = gi - 8
            a.salu('s_add_u32', S_T1, S_KOFF, gplace(q4))
            for t in range(4 * q4, 4 * q4 + 4):
                a.vmem_load('buffer_load_dwordx4', vr(VD + 4 * t, 4), V_VV, srd(SRD_V), S_T1, offset=1024 * (t % 4), flags=ntf)

    def signal(off, val):
        a.salu('s_mov_b64', 'exec', 1)
        a.valu('v_mov_b32', V_S, val)
        a.ds_write('ds_write_b32', V_FA, V_S, offset=off)
        a.salu('s_mov_b64', 'exec', -1)

    S_LAST = 's62'
    nchk = [0]
    def check(issued):
        k = nchk[0]; nchk[0] += 1
        if opts.get('nochk', 0) and issued < 64:
            return
        a.scmp('s_cmp_ge_i32', S_LAST, 9)
        a.branch('s_cbranch_scc1', f'L_chk{k}')
        a.salu('s_getreg_b32', S_T2, 'hwreg(HW_REG_IB_STS)')
        a.salu('s_and_b32', S_T3, S_T2, 15)
        a.salu('s_bfe_u32', S_T2, S_T2, hex(22 | (2 << 16)))
        a.salu('s_lshl_b32', S_T2, S_T2, 4)
        a.salu('s_or_b32', S_T3, S_T3, S_T2)
        a.salu('s_sub_i32', S_T3, issued + 4, S_T3)
        a.salu('s_ashr_i32', S_T3, S_T3, 2)
        a.salu('s_min_i32', S_T3, S_T3, 9)
        a.scmp('s_cmp_le_i32', S_T3, S_LAST)
        a.branch('s_cbranch_scc1', f'L_chk{k}')
        a.salu('s_mov_b32', S_LAST, S_T3)
        signal(0, S_LAST)
        a.label(f'L_chk{k}')
    a.salu('s_mov_b32', S_LAST, 0)
    for gi in range(PRE):
        group(gi)
    a.other('s_barrier')
    stamp(2)
    for gi in range(PRE, 16):
        group(gi)
        check(4 * (gi + 1))
        if gi == 7: stamp(3)
    stamp(4)
    a.label('L_drain')
    check(64)
    a.scmp('s_cmp_ge_i32', S_LAST, 9)
    a.branch('s_cbranch_scc0', 'L_drain')
    stamp(5)
    a.valu('v_and_b32', 'v8', 1, V_N)
    a.valu('v_mov_b32', 'v9', '0xffff')
    a.valu('v_mov_b32', 'v10', '0xffff0000')
    a.vcmp('v_cmp_eq_u32', 'vcc', 1, 'v8')
    a.valu('v_cndmask_b32', 'v9', 'v9', 'v10', 'vcc')
    a.valu('v_bfe_u32', 'v8', V_N, 1, 2)
    for r in range(4):
        a.vcmp('v_cmp_eq_u32', 'vcc', r, 'v8')
        a.valu('v_cndmask_b32', v(PVM + r), 0, 'v9', 'vcc')
    a.salu('s_lshl_b32', S_T0, S_J, 10)
    a.salu('s_add_u32', S_T1, S_T0, LDS_WX)
    a.valu('v_lshl_add_u32', 'v10', V_N, 2, V_G)
    a.valu('v_lshl_add_u32', 'v10', 'v10', 3, S_T1)
    a.salu('s_add_u32', S_T1, S_T0, LDS_RED)
    a.valu('v_lshl_add_u32', 'v11', V_LANE, 4, S_T1)
    a.label('L_wpoll')
    a.ds_read('ds_read_b32', 'v8', V_FA, offset=8)
    a.wait(lgkm=0)
    a.valu('v_readfirstlane_b32', S_T0, 'v8')
    a.scmp('s_cmp_lg_u32', S_T0, 0)
    a.branch('s_cbranch_scc1', 'L_wready')
    a.other(f's_sleep {SLEEP}')
    a.salu('s_add_u32', 's58', 's58', 1)
    a.scmp('s_cmp_lt_u32', 's58', 0x80000)
    a.branch('s_cbranch_scc1', 'L_wpoll')
    a.label('L_wready')
    a.ds_read('ds_read_b64', vr(PX, 2), 'v10')
    a.ds_read('ds_read_b64', vr(PX + 2, 2), 'v10', offset=512)
    a.wait(lgkm=0)
    stamp(6)
    def build(t):
        b = B3 + 4 * (t % 4)
        tmp = TT[t % 4]
        ph, pl = PX + 2 * (t // 16), PX + 2 * (t // 16) + 1
        a.valu('v_mov_b32_dpp', v(tmp), v(ph), mods=f'row_newbcast:{t % 16} row_mask:0xf bank_mask:0x3', dpp=True)
        a.valu('v_mov_b32_dpp', v(tmp), v(pl), mods=f'row_newbcast:{t % 16} row_mask:0xf bank_mask:0xc', dpp=True)
        for r in range(4):
            a.valu('v_and_b32', v(b + r), v(tmp), v(PVM + r))
    build(0); build(1)
    for t in range(32):
        if t + 2 < 32:
            build(t + 2)
        a.wait(vm=31 - t)
        if t in (0, 31): stamp()
        a.mfma('16x16x32', vr(D3, 4), vr(VD + 4 * t, 4), vr(B3 + 4 * (t % 4), 4), 0 if t == 0 else vr(D3, 4))
    a.ds_write('ds_write_b128', 'v11', vr(D3, 4))
    a.wait(lgkm=0)
    signal(12, 1)
    stamp()
    NL = nst[0]
    a.branch('s_branch', 'L_end_l')

    a.label('L_compute')
    RA = [4, 5, 6, 7]; RK8 = [8, 9, 10, 11]
    V_FA, VQ = 'v12', 'v13'
    WA = [14, 15]
    CEPS, MASK, NEGH, IDA = 16, 20, 22, 24
    VHI, VLOG2E = 'v26', 'v27'
    AS = 28
    A2, Q, CQ = 32, 40, 48
    T = [52, 53, 54, 55]
    W2 = 56
    G = [64, 68]
    SD = 72
    KS = 84
    E = 100
    D1 = [116, 132]
    RAW = 148
    OM = 192
    EIGHTH, C1E6 = 180, 184
    X = [182, 183, 188, 189, 190, 191]

    a.other('s_setprio 2')
    a.scmp('s_cmp_eq_u32', S_WAVE, 4)
    a.salu('s_cselect_b32', S_CNT, S_SPLIT, 0)
    for i in range(4):
        a.valu('v_mov_b32', v(W2 + 4 + i), -1)
    a.valu('v_lshlrev_b32', 'v19', 4, V_LANE)
    for i in range(4):
        a.valu('v_mov_b32', v(W2 + i), 0)
    a.salu('s_lshl_b32', S_F, S_J, 4)
    a.salu('s_add_u32', S_F, S_F, LDS_FLG)
    a.valu('v_mov_b32', V_FA, S_F)
    a.salu('s_mov_b64', 'exec', 1)
    a.ds_write('ds_write_b128', V_FA, vr(W2, 4))
    a.salu('s_mov_b64', 'exec', -1)
    a.wait(lgkm=0)
    a.scmp('s_cmp_eq_u32', S_CNT, 0)
    a.branch('s_cbranch_scc1', 'L_noclear')
    a.vmem_store('buffer_store_dwordx4', vr(W2 + 4, 4), 'v19', srd(SRD_WS), S_SLOT, flags='sc1')
    a.label('L_noclear')
    a.other('s_barrier')
    stamp(1)
    if opts.get('nocompute', 0):
        a.salu('s_mov_b64', 'exec', 1)
        a.valu('v_mov_b32', v(X[1]), 1)
        a.ds_write('ds_write_b32', V_FA, v(X[1]), offset=8)
        a.salu('s_mov_b64', 'exec', -1)
        a.wait(lgkm=0)
        nst[0] = 9
        a.branch('s_branch', 'L_idle')
    a.valu('v_lshl_or_b32', v(RA[0]), V_N, 8, 'v14')
    for i in range(1, 4):
        a.valu('v_xor_b32', v(RA[i]), i << 6, v(RA[0]))
    a.valu('v_mov_b32', VHI, '0xffff0000')
    a.valu('v_mov_b32', VLOG2E, hex(f32bits(1.4426950408889634)))
    a.valu('v_lshrrev_b32', v(T[0]), 2, V_N)
    a.valu('v_and_b32', v(T[1]), 3, V_N)
    a.valu('v_and_b32', v(T[2]), 1, V_N)
    a.valu('v_mov_b32', v(T[3]), '0xffff')
    a.vcmp('v_cmp_eq_u32', 'vcc', 1, v(T[2]))
    a.valu('v_cndmask_b32', v(T[3]), v(T[3]), VHI, 'vcc')
    a.vcmp('v_cmp_eq_u32', 'vcc', V_G, v(T[0]))
    a.valu('v_cndmask_b32', v(T[3]), 0, v(T[3]), 'vcc')
    a.vcmp('v_cmp_gt_u32', 'vcc', 2, v(T[1]))
    a.valu('v_cndmask_b32', v(MASK), 0, v(T[3]), 'vcc')
    a.valu('v_cndmask_b32', v(MASK + 1), v(T[3]), 0, 'vcc')
    a.valu('v_and_b32', v(IDA), '0x3f803f80', v(MASK))
    a.valu('v_and_b32', v(IDA + 1), '0x3f803f80', v(MASK + 1))
    a.valu('v_and_b32', v(EIGHTH), '0x3e003e00', v(MASK))
    a.valu('v_and_b32', v(EIGHTH + 1), '0x3e003e00', v(MASK + 1))
    a.valu('v_and_b32', v(AS), '0x3e983e98', v(MASK))
    a.valu('v_and_b32', v(AS + 1), '0x3e983e98', v(MASK + 1))
    a.valu('v_and_b32', v(AS + 2), '0x39e039e0', v(MASK))
    a.valu('v_and_b32', v(AS + 3), '0x39e039e0', v(MASK + 1))
    a.valu('v_mov_b32', v(NEGH), '0xbf00bf00')
    a.valu('v_mov_b32', v(NEGH + 1), '0xbf00bf00')
    for i in range(4):
        a.valu('v_mov_b32', v(C1E6 + i), hex(EPS_BITS))
    a.valu('v_lshlrev_b32', VQ, 4, V_G)
    a.valu('v_add_u32', VQ, LDS_Q, VQ)
    a.valu('v_and_b32', v(X[0]), 3, V_LANE)
    a.valu('v_lshlrev_b32', v(X[0]), 4, v(X[0]))
    a.valu('v_add_u32', v(X[0]), LDS_FLG, v(X[0]))
    for u in range(4):
        a.valu('v_add_u32', v(RK8[u]), S_KLDS, v(RA[u]))
    a.label('L_ompoll')
    a.ds_read('ds_read_b32', v(X[1]), v(X[0]))
    a.wait(lgkm=0)
    a.vcmp('v_cmp_eq_u32', 'vcc', 0, v(X[1]))
    a.branch('s_cbranch_vccz', 'L_omready')
    a.other(f's_sleep {SLEEP}')
    a.salu('s_add_u32', 's58', 's58', 1)
    a.scmp('s_cmp_lt_u32', 's58', 0x80000)
    a.branch('s_cbranch_scc1', 'L_ompoll')
    a.label('L_omready')
    stamp(2)
    for u in range(4):
        for h in range(2):
            p = 2 * u + h
            a.emit(Ins(f'ds_read2_b64 {vr(RAW + 4 * p, 4)}, {VQ} offset0:{8*u+h} offset1:{8*u+h}', 'ds', _regs(VQ), _regs(vr(RAW + 4 * p, 4))))
    for tm in range(4):
        for u in range(4):
            a.ds_read('ds_read_b128', vr(OM + 16 * tm + 4 * u, 4), v(RA[u]), offset=LDS_OM + 4096 * tm)
    for u in range(4):
        a.valu('v_mov_b32', v(RA[u]), v(RK8[u]))
        a.valu('v_add_u32', v(RK8[u]), 8, v(RK8[u]))
    RK = RA

    def cvt(dst, src, tm):
        a.valu('v_cvt_pk_bf16_f32', v(dst + 2 * tm), v(src + 4 * tm), v(src + 4 * tm + 1))
        a.valu('v_cvt_pk_bf16_f32', v(dst + 2 * tm + 1), v(src + 4 * tm + 2), v(src + 4 * tm + 3))

    def front(b):
        g, d1 = G[b], D1[b]
        for p in range(8):
            sd = SD + 4 * (p % 3)
            a.mfma('16x16x32', vr(sd, 4), vr(AS, 4), vr(RAW + 4 * p, 4), 0)
            a.valu('v_cvt_pk_bf16_f32', v(KS + 2 * p), v(sd), v(sd + 1))
            a.valu('v_cvt_pk_bf16_f32', v(KS + 2 * p + 1), v(sd + 2), v(sd + 3))
            if p % 2 == 1:
                u = p // 2
                f = vr(KS + 4 * u, 4)
                a.mfma('16x16x32', vr(g, 4), f, f, 0 if u == 0 else vr(g, 4))
                for tm in range(4):
                    a.mfma('16x16x32', vr(d1 + 4 * tm, 4), vr(OM + 16 * tm + 4 * u, 4), f, 0 if u == 0 else vr(d1 + 4 * tm, 4))

    def back(b, qdst, is_q):
        g, d1 = G[b], D1[b]
        a.valu('v_cvt_pk_bf16_f32', v(T[0]), v(g), v(g + 1))
        a.valu('v_cvt_pk_bf16_f32', v(T[1]), v(g + 2), v(g + 3))
        a.valu('v_and_b32', v(T[0]), v(T[0]), v(MASK))
        a.valu('v_and_b32', v(T[1]), v(T[1]), v(MASK + 1))
        a.mfma('16x16x16', vr(CQ, 4), vr(NEGH, 2), vr(T[0], 2), 0)
        for tm in range(4):
            cvt(qdst, d1, tm)
        for tm in range(4):
            a.mfma('16x16x16', vr(E + 4 * tm, 4), vr(IDA, 2), vr(qdst + 2 * tm, 2), vr(CQ, 4))
        for tm in range(4):
            cvt(qdst, E, tm)
        for tm in range(4):
            for h in range(2):
                x = qdst + 2 * tm + h
                d0, dd1 = d1 + 4 * tm + 2 * h, d1 + 4 * tm + 2 * h + 1
                a.valu('v_lshlrev_b32', v(d0), 16, v(x))
                a.valu('v_and_b32', v(dd1), VHI, v(x))
                a.valu('v_mul_f32', v(d0), VLOG2E, v(d0))
                a.valu('v_mul_f32', v(dd1), VLOG2E, v(dd1))
                a.valu('v_exp_f32', v(d0), v(d0))
                a.valu('v_exp_f32', v(dd1), v(dd1))
        for tm in range(4):
            cvt(qdst, d1, tm)
        if is_q:
            for tm in range(4):
                a.mfma('16x16x16', vr(E + 4 * tm, 4), vr(EIGHTH, 2), vr(qdst + 2 * tm, 2), vr(C1E6, 4))
            for tm in range(4):
                cvt(qdst, E, tm)
            for i in range(4):
                a.valu('v_mov_b32', v(E + i), '0x3f803f80')
            a.mfma('16x16x32', vr(CEPS, 4), vr(A2, 4), vr(E, 4), 0)
            a.mfma('16x16x32', vr(CEPS, 4), vr(A2 + 4, 4), vr(E, 4), vr(CEPS, 4))
            for i in range(8):
                a.valu('v_subrev_u32', v(A2 + i), '0x01800180', v(A2 + i))
            a.valu('v_mov_b32', v(T[2]), hex(EPS_BITS))
            for i in range(4):
                a.valu('v_mul_f32', v(CEPS + i), v(T[2]), v(CEPS + i))

    def wfin(tk):
        w2 = W2 + 4 * (tk & 1)
        a.mfma('16x16x32', vr(w2, 4), vr(A2, 4), vr(Q, 4), vr(CEPS, 4))
        a.mfma('16x16x32', vr(w2, 4), vr(A2 + 4, 4), vr(Q + 4, 4), vr(w2, 4))
        a.valu('v_mov_b32_dpp', v(WA[tk // 4]), v(w2), mods=f'quad_perm:[0,1,2,3] row_mask:{hex(1 << (tk % 4))} bank_mask:0xf', dpp=True)

    def kpoll_read(tk):
        a.label(f'L_kpoll{tk}')
        a.ds_read('ds_read_b32', v(X[1]), V_FA)
        a.wait(lgkm=0)
        a.valu('v_readfirstlane_b32', S_T0, v(X[1]))
        a.scmp('s_cmp_gt_u32', S_T0, tk + 1)
        a.branch('s_cbranch_scc1', f'L_kready{tk}')
        a.other(f's_sleep {SLEEP}')
        a.salu('s_add_u32', 's58', 's58', 1)
        a.scmp('s_cmp_lt_u32', 's58', 0x80000)
        a.branch('s_cbranch_scc1', f'L_kpoll{tk}')
        a.label(f'L_kready{tk}')
        for u in range(4):
            for h in range(2):
                p = 2 * u + h
                addr = v(RK[u]) if h == 0 else v(RK8[u])
                a.emit(Ins(f'ds_read2st64_b64 {vr(RAW + 4 * p, 4)}, {addr} offset0:{8*tk} offset1:{8*tk}', 'ds', _regs(addr), _regs(vr(RAW + 4 * p, 4))))

    a.begin()
    a.wait_for([vr(RAW, 32), vr(OM, 64)], lgkm=0)
    front(1)
    a.end(VERB)
    stamp(3)
    for tk in range(8):
        kpoll_read(tk)
        if tk in (0, 1, 4, 7): stamp()
        a.begin()
        if tk == 0:
            back(1, A2, True)
        else:
            back((tk - 1) & 1, Q, False)
            wfin(tk - 1)
        a.wait_for([vr(RAW, 32)], lgkm=0)
        front(tk & 1)
        a.end(VERB)
        if tk == 0:
            a.scmp('s_cmp_eq_u32', S_CNT, 0)
            a.branch('s_cbranch_scc1', 'L_noflag')
            a.wait(vm=0)
            a.salu('s_mov_b64', 'exec', 1)
            a.valu('v_mov_b32', v(X[1]), 1)
            a.salu('s_lshl_b32', S_T0, S_HEAD, 2)
            a.vmem_store('buffer_atomic_add', v(X[1]), None, srd(SRD_DBG), S_T0, flags='sc1')
            a.salu('s_mov_b64', 'exec', -1)
            a.label('L_noflag')
    a.begin()
    back(1, Q, False)
    wfin(7)
    for h in range(2):
        a.valu('v_cvt_pk_bf16_f32', v(E + 2 * h), v(WA[h]), v(WA[h]))
        a.valu('v_and_b32', v(T[h]), VHI, v(E + 2 * h))
        a.valu('v_sub_f32', v(T[h]), v(WA[h]), v(T[h]))
        a.valu('v_cvt_pk_bf16_f32', v(E + 2 * h + 1), v(T[h]), v(T[h]))
    a.valu('v_add_f32', v(T[2]), v(WA[0]), v(WA[1]))
    for sh in (8, 4, 2, 1):
        a.valu('v_add_f32_dpp', v(T[2]), v(T[2]), v(T[2]), mods=f'row_ror:{sh} row_mask:0xf bank_mask:0xf', dpp=True)
    a.salu('s_lshl_b32', S_T0, S_J, 10)
    a.salu('s_add_u32', S_T0, S_T0, LDS_WX)
    a.valu('v_lshl_add_u32', v(X[0]), V_LANE, 3, S_T0)
    a.ds_write('ds_write_b64', v(X[0]), vr(E, 2))
    a.ds_write('ds_write_b64', v(X[0]), vr(E + 2, 2), offset=512)
    a.salu('s_lshl_b32', S_T1, S_J, 4)
    a.salu('s_add_u32', S_T1, S_T1, LDS_DEN)
    a.valu('v_lshl_add_u32', v(T[3]), V_G, 2, S_T1)
    a.ds_write('ds_write_b32', v(T[3]), v(T[2]))
    a.end(VERB)
    a.wait(lgkm=0)
    a.salu('s_mov_b64', 'exec', 1)
    a.valu('v_mov_b32', v(X[1]), 1)
    a.ds_write('ds_write_b32', V_FA, v(X[1]), offset=8)
    a.salu('s_mov_b64', 'exec', -1)
    stamp()
    a.scmp('s_cmp_ge_u32', S_WAVE, 6)
    a.branch('s_cbranch_scc1', 'L_idle')
    V_D, RED_R, V_D8, NUM, DEN, FLAG, TT2, SUMN = 4, 5, 6, 7, 8, 9, 10, 11
    DS = 116
    a.valu('v_subrev_u32', v(V_D), 256, V_TID)
    a.valu('v_lshrrev_b32', v(V_D8), 5, v(V_D))
    a.valu('v_and_b32', v(TT2), 7, v(V_D))
    a.valu('v_lshl_add_u32', v(V_D8), v(V_D8), 4, v(TT2))
    a.valu('v_bfe_u32', v(TT2), v(V_D), 3, 2)
    a.valu('v_lshlrev_b32', v(TT2), 2, v(TT2))
    a.valu('v_lshl_add_u32', v(RED_R), v(V_D8), 4, v(TT2))
    a.valu('v_add_u32', v(RED_R), LDS_RED, v(RED_R))
    a.valu('v_lshlrev_b32', v(V_D8), 3, v(V_D))
    a.valu('v_and_b32', v(X[0]), 3, V_LANE)
    a.valu('v_lshlrev_b32', v(X[0]), 4, v(X[0]))
    a.valu('v_add_u32', v(X[0]), LDS_FLG, v(X[0]))
    a.label('L_denpoll')
    a.ds_read('ds_read_b32', v(X[1]), v(X[0]), offset=8)
    a.wait(lgkm=0)
    a.vcmp('v_cmp_ne_u32', 'vcc', 1, v(X[1]))
    a.branch('s_cbranch_vccz', 'L_denready')
    a.other(f's_sleep {SLEEP}')
    a.salu('s_add_u32', 's58', 's58', 1)
    a.scmp('s_cmp_lt_u32', 's58', 0x80000)
    a.branch('s_cbranch_scc1', 'L_denpoll')
    a.label('L_denready')
    a.valu('v_mov_b32', v(X[0]), LDS_DEN)
    for i in range(4):
        a.ds_read('ds_read_b128', vr(DS + 4 * i, 4), v(X[0]), offset=16 * i)
    a.wait(lgkm=0)
    for st in (8, 4, 2):
        for i in range(st):
            a.valu('v_add_f32', v(DS + i), v(DS + i), v(DS + i + st))
    a.valu('v_add_f32', v(DEN), v(DS), v(DS + 1))
    a.valu('v_and_b32', v(X[0]), 3, V_LANE)
    a.valu('v_lshlrev_b32', v(X[0]), 4, v(X[0]))
    a.valu('v_add_u32', v(X[0]), LDS_FLG, v(X[0]))
    def own_num():
        for i in range(8):
            a.ds_read('ds_read_b32', v(DS + i), v(RED_R), offset=1024 * (i >> 1) + 128 * (i & 1))
        a.wait(lgkm=0)
        for st in (4, 2):
            for i in range(st):
                a.valu('v_add_f32', v(DS + i), v(DS + i), v(DS + i + st))
        a.valu('v_add_f32', v(NUM), v(DS), v(DS + 1))
    def pv_wait(tag):
        a.label(f'L_pv{tag}')
        a.ds_read('ds_read_b32', v(X[1]), v(X[0]), offset=12)
        a.wait(lgkm=0)
        a.vcmp('v_cmp_ne_u32', 'vcc', 1, v(X[1]))
        a.branch('s_cbranch_vccz', f'L_pvok{tag}')
        a.salu('s_add_u32', 's58', 's58', 1)
        a.scmp('s_cmp_lt_u32', 's58', 0x100000)
        a.branch('s_cbranch_scc1', f'L_pv{tag}')
        a.label(f'L_pvok{tag}')
    a.scmp('s_cmp_eq_u32', S_SPLIT, 0)
    a.branch('s_cbranch_scc1', 'L_consumer')
    pv_wait('P')
    stamp()
    own_num()
    a.valu('v_min_u32', v(DS), -2, v(NUM))
    a.valu('v_min_u32', v(DS + 1), -2, v(DEN))
    a.vmem_store('buffer_store_dwordx2', vr(DS, 2), v(V_D8), srd(SRD_WS), S_SLOT, flags='sc1')
    a.branch('s_branch', 'L_end_c')
    a.label('L_consumer')
    a.salu('s_mov_b32', S_T1, 0)
    a.salu('s_lshl_b32', S_T0, S_HEAD, 2)
    a.other('s_setprio 3')
    a.label('L_flagloop')
    a.vmem_load('buffer_load_dword', v(FLAG), None, srd(SRD_DBG), S_T0, flags='sc1')
    a.wait(vm=0)
    a.vcmp('v_cmp_gt_u32', 'vcc', 7, v(FLAG))
    a.branch('s_cbranch_vccz', 'L_flagok')
    a.salu('s_add_u32', S_T1, S_T1, 1)
    a.scmp('s_cmp_gt_u32', S_T1, 0x40000)
    a.branch('s_cbranch_scc0', 'L_flagloop')
    a.label('L_flagok')
    NR = opts.get('rounds', 3)
    PB_ = [132, 148, 164, 84]
    S_ND = S_T3
    a.salu('s_mov_b32', S_T1, 0)
    a.salu('s_mov_b32', S_ND, 0)
    def issue_round(r):
        for j in range(1, 8):
            a.salu('s_add_u32', S_T2, S_SLOT, 1024 * j)
            a.vmem_load('buffer_load_dwordx2', vr(PB_[r] + 2 * j, 2), v(V_D8), srd(SRD_WS), S_T2, flags='sc1')
    for r in range(NR):
        issue_round(r)
        if r < NR - 1 and opts.get('rsleep', 6):
            a.other(f"s_sleep {opts.get('rsleep', 6)}")
    a.label('L_pollloop')
    for r in range(NR):
        B = PB_[r]
        a.wait(vm=7 * (NR - 1))
        a.valu('v_max3_u32', v(TT2), v(B + 2), v(B + 3), v(B + 4))
        for k in range(5):
            a.valu('v_max3_u32', v(TT2), v(TT2), v(B + 5 + 2 * k), v(B + 6 + 2 * k))
        a.valu('v_max_u32', v(TT2), v(TT2), v(B + 15))
        a.vcmp('v_cmp_eq_u32', 'vcc', -1, v(TT2))
        a.branch('s_cbranch_vccz', f'L_done{r}')
        issue_round(r)
        a.scmp('s_cmp_lg_u32', S_ND, 0)
        a.branch('s_cbranch_scc1', f'L_nd{r}')
        a.ds_read('ds_read_b32', v(X[1]), v(X[0]), offset=12)
        a.wait(lgkm=0)
        a.vcmp('v_cmp_ne_u32', 'vcc', 1, v(X[1]))
        a.branch('s_cbranch_vccnz', f'L_nd{r}')
        own_num()
        a.salu('s_mov_b32', S_ND, 1)
        a.label(f'L_nd{r}')
    a.salu('s_add_u32', S_T1, S_T1, 1)
    a.scmp('s_cmp_gt_u32', S_T1, 0x20000)
    a.branch('s_cbranch_scc0', 'L_pollloop')
    for r in range(NR):
        B = PB_[r]
        a.label(f'L_done{r}')
        a.valu('v_add_f32', v(SUMN), v(B + 2), v(B + 4))
        a.valu('v_add_f32', v(DEN), v(DEN), v(B + 3))
        for j in range(2, 8):
            if j > 2: a.valu('v_add_f32', v(SUMN), v(SUMN), v(B + 2 * j))
            a.valu('v_add_f32', v(DEN), v(DEN), v(B + 2 * j + 1))
        if r < NR - 1:
            a.branch('s_branch', 'L_fin')
    a.label('L_fin')
    a.scmp('s_cmp_lg_u32', S_ND, 0)
    a.branch('s_cbranch_scc1', 'L_fin2')
    pv_wait('C')
    own_num()
    a.label('L_fin2')
    stamp()
    a.valu('v_add_f32', v(NUM), v(NUM), v(SUMN))
    a.valu('v_add_f32', v(DEN), hex(EPS_BITS), v(DEN))
    a.valu('v_rcp_f32', v(TT2), v(DEN))
    a.valu('v_mul_f32', v(NUM), v(NUM), v(TT2))
    a.valu('v_cvt_pk_bf16_f32', v(NUM), v(NUM), v(NUM))
    a.salu('s_lshl_b32', S_T0, S_HEAD, 8)
    a.valu('v_lshlrev_b32', v(TT2), 1, v(V_D))
    a.vmem_store('buffer_store_short', v(NUM), v(TT2), srd(SRD_OUT), S_T0)
    a.branch('s_branch', 'L_end_c')
    a.label('L_idle')
    a.label('L_end_c')
    stamp()
    a.label('L_end_l')
    dump_stamps(max(NL, nst[0]))
    a.label('L_end')
    a.other('s_endpgm')

    hdr = open('standalone__linear_kernel_rfa__decode.s.ref').read().split('\n')
    head_comments = [l for l in hdr if l.startswith(';') and '@launch' not in l and 'Override' not in l and 'grid=ceil' not in l]
    txt = '\n'.join(head_comments) + '\n'
    txt += f'; @launch grid=(256,1,1) block=(512,1,1) lds={LDS_TOTAL}\n'
    txt += '.amdgcn_target "amdgcn-amd-amdhsa--gfx950"\n.text\n'
    txt += f'.globl {KNAME}\n.p2align 8\n.type {KNAME},@function\n{KNAME}:\n'
    txt += a.text()
    txt += f'''.section .rodata,"a"
.p2align 6
.amdhsa_kernel {KNAME}
  .amdhsa_next_free_vgpr 256
  .amdhsa_next_free_sgpr 102
  .amdhsa_accum_offset 256
  .amdhsa_group_segment_fixed_size 0
  .amdhsa_kernarg_size 56
  .amdhsa_user_sgpr_count 2
  .amdhsa_user_sgpr_kernarg_segment_ptr 1
  .amdhsa_system_sgpr_workgroup_id_x 1
  .amdhsa_float_denorm_mode_32 3
.end_amdhsa_kernel
'''
    return txt, a

if __name__ == '__main__':
    out = sys.argv[1]
    opts = {}
    for kv in sys.argv[2:]:
        k, val = kv.split('=')
        opts[k] = int(val, 0)
    txt, a = gen(opts)
    open(out, 'w').write(txt)
    print('instructions', a.count, 'nop states', a.nops)
```

```python
import sys
import numpy as np
from asmlib import SAsm, Ins, _regs

def f32bits(x):
    return int(np.float32(x).view(np.uint32))

ARRS = ['j0,j1,g0,g1,g2,s0,s1,s2', 'j0,j1,s0,g0,s1,g1,s2,g2', 'j0,j1,s0,g0,g1,g2,s1,s2', 's0,j0,j1,g0,g1,g2,s1,s2', 'g0,g1,g2,j0,j1,s0,s1,s2']
KNAME = 'standalone__linear_kernel_rfa__decode_kernel'

def gen(opts):
    NT = opts.get('nt', 1)
    DEPTH = opts.get('depth', 3)
    PRE = opts.get('pre', 2)
    STAMPS = opts.get('stamps', 0)
    VERB = opts.get('verbose', 0)
    SLEEP = opts.get('sleep', 1)
    EPS_BITS = 0x35860000
    a = SAsm()
    nst = [0]
    def stamp(i=None):
        if STAMPS:
            if i is None:
                i = nst[0]
            nst[0] = i + 1
            assert 64 + 2 * i + 1 <= 101
            a.emit(Ins(f's_memrealtime s[{64+2*i}:{65+2*i}]', 'other'))
    def dump_stamps(n):
        if not STAMPS: return
        a.wait(lgkm=0)
        a.salu('s_mov_b64', 'exec', -1)
        a.valu('v_mov_b32', 'v100', 0)
        for i in range(n):
            a.valu('v_writelane_b32', 'v100', f's{64+2*i}', i, rmw=True)
        a.salu('s_getreg_b32', 's52', 'hwreg(HW_REG_XCC_ID)')
        a.valu('v_writelane_b32', 'v100', 's52', 31, rmw=True)
        a.salu('s_lshl_b32', 's52', 's2', 3)
        a.salu('s_add_u32', 's52', 's52', 's50')
        a.salu('s_lshl_b32', 's52', 's52', 7)
        a.salu('s_add_u32', 's52', 's52', 0x80000)
        a.valu('v_lshlrev_b32', 'v101', 2, 'v1')
        a.vcmp('v_cmp_gt_u32', 'vcc', 32, 'v1')
        a.salu('s_and_b64', 'exec', 'exec', 'vcc')
        a.vmem_store('buffer_store_dword', 'v100', 'v101', 's[36:39]', 's52')
        a.salu('s_mov_b64', 'exec', -1)

    LDS_OM = 0
    LDS_K = 16384
    LDS_RED = 16384 + 4 * 32768
    LDS_WX = LDS_RED + 4096
    LDS_DEN = LDS_WX + 4096
    LDS_FLG = LDS_DEN + 64
    LDS_Q = LDS_FLG + 192
    LDS_TOTAL = LDS_Q + 1024

    SRD_K, SRD_V, SRD_OM, SRD_Q, SRD_WS, SRD_DBG, SRD_OUT = 20, 24, 28, 32, 36, 40, 44
    def srd(b): return f's[{b}:{b+3}]'
    S_HEAD, S_SPLIT, S_WAVE, S_KOFF = 's48', 's49', 's50', 's51'
    S_T0, S_T1, S_T2, S_T3 = 's52', 's53', 's54', 's55'
    S_J, S_F = 's56', 's57'
    S_KLDS, S_CNT, S_SLOT = 's59', 's60', 's61'
    def v(i): return f'v{i}'
    def vr(i, n): return f'v[{i}:{i+n-1}]'
    ntf = 'nt' if NT else ''
    V_TID, V_LANE, V_G, V_N = 'v0', 'v1', 'v2', 'v3'

    a.scmp('s_cmp_ge_u32', 's2', 256)
    a.branch('s_cbranch_scc1', 'L_end')
    if STAMPS:
        for i in range(66, 102, 2):
            a.salu('s_mov_b64', f's[{i}:{i+1}]', 0)
    stamp(0)
    a.salu('s_load_dwordx2', f's[{SRD_OM}:{SRD_OM+1}]', 's[0:1]', 24)
    a.salu('s_load_dwordx2', f's[{SRD_K}:{SRD_K+1}]', 's[0:1]', 8)
    a.salu('s_load_dwordx2', f's[{SRD_Q}:{SRD_Q+1}]', 's[0:1]', 0)
    a.salu('s_load_dwordx2', f's[{SRD_V}:{SRD_V+1}]', 's[0:1]', 16)
    a.salu('s_load_dwordx2', f's[{SRD_WS}:{SRD_WS+1}]', 's[0:1]', 48)
    a.salu('s_load_dwordx2', f's[{SRD_DBG}:{SRD_DBG+1}]', 's[0:1]', 40)
    a.salu('s_load_dwordx2', f's[{SRD_OUT}:{SRD_OUT+1}]', 's[0:1]', 32)
    a.valu('v_lshrrev_b32', 'v13', 6, V_TID)
    a.valu('v_and_b32', V_LANE, 63, V_TID)
    a.valu('v_readfirstlane_b32', S_WAVE, 'v13')
    a.valu('v_lshrrev_b32', V_G, 4, V_LANE)
    a.valu('v_and_b32', V_N, 15, V_LANE)
    DEC = opts.get('dec', 2)
    if DEC == 1:
        a.salu('s_lshr_b32', S_HEAD, 's2', 3)
        a.salu('s_and_b32', S_SPLIT, 's2', 7)
    elif DEC == 0:
        a.salu('s_and_b32', S_HEAD, 's2', 31)
    else:
        a.salu('s_and_b32', S_HEAD, 's2', 7)
        a.salu('s_lshl_b32', S_HEAD, S_HEAD, 2)
        a.salu('s_bfe_u32', S_T0, 's2', '0x20003')
        a.salu('s_or_b32', S_HEAD, S_HEAD, S_T0)
    if DEC != 1:
        a.salu('s_lshr_b32', S_SPLIT, 's2', 5)
    for b, size in ((SRD_OM, 16384), (SRD_K, 1 << 25), (SRD_Q, 8192), (SRD_V, 1 << 25), (SRD_WS, 1 << 20), (SRD_DBG, 256), (SRD_OUT, 8192)):
        a.salu('s_mov_b32', f's{b+2}', hex(size))
        a.salu('s_mov_b32', f's{b+3}', '0x00020000')
    a.valu('v_xor_b32', 'v14', V_G, V_N)
    a.valu('v_lshlrev_b32', 'v14', 4, 'v14')
    a.salu('s_and_b32', S_J, S_WAVE, 3)
    a.salu('s_mov_b32', 's58', 0)
    a.salu('s_lshl_b32', S_T0, S_J, 15)
    a.salu('s_add_u32', S_KLDS, S_T0, LDS_K)
    a.salu('s_lshl_b32', S_SLOT, S_HEAD, 3)
    a.salu('s_add_u32', S_SLOT, S_SLOT, S_SPLIT)
    a.salu('s_lshl_b32', S_SLOT, S_SLOT, 10)
    a.scmp('s_cmp_ge_u32', S_WAVE, 4)
    a.branch('s_cbranch_scc1', 'L_compute')

    VO = [4, 5, 6, 7]
    V_VV, V_FA, V_S = 'v12', 'v13', 'v15'
    D3, PVM, PX = 16, 20, 24
    B3 = 32
    TT = [48, 49, 50, 51]
    VD = 128
    a.valu('v_lshl_or_b32', v(VO[0]), V_G, 8, 'v14')
    for i in range(1, 4):
        a.valu('v_xor_b32', v(VO[i]), i << 6, v(VO[0]))
    a.valu('v_lshlrev_b32', V_VV, 4, V_LANE)
    a.valu('v_lshlrev_b32', 'v19', 4, V_LANE)
    ARR = ARRS[opts.get('arr', 0)].split(',')
    a.salu('s_lshl_b32', S_KOFF, S_HEAD, 20)
    for pos, tk in enumerate(ARR):
        if tk[0] in 'sj':
            src = S_SPLIT if tk[0] == 's' else S_J
            a.salu('s_bfe_u32', S_T1, src, hex(int(tk[1]) | (1 << 16)))
            a.salu('s_lshl_b32', S_T1, S_T1, 12 + pos)
            a.salu('s_or_b32', S_KOFF, S_KOFF, S_T1)
    GX = opts.get('gx', 0)
    S_GX = 's63'
    if GX:
        gpos = [pos for pos, tk in enumerate(ARR) if tk[0] == 'g']
        assert gpos == list(range(gpos[0], gpos[0] + 3)) and [ARR[p] for p in gpos] == ['g0', 'g1', 'g2']
        a.salu('s_lshr_b32', S_T1, S_HEAD, 3 if GX == 1 else 2)
        a.salu('s_xor_b32', S_T1, S_T1, S_HEAD)
        a.salu('s_xor_b32', S_T1, S_T1, S_SPLIT)
        a.salu('s_and_b32', S_T1, S_T1, 7)
        a.salu('s_lshl_b32', S_GX, S_T1, 12 + gpos[0])
        a.salu('s_or_b32', S_KOFF, S_KOFF, S_GX)
    def gplace(g):
        x = 0
        for pos, tk in enumerate(ARR):
            if tk[0] == 'g' and (g >> int(tk[1])) & 1: x |= 1 << (12 + pos)
        return x
    a.salu('s_lshl_b32', S_T2, S_J, 12)
    a.salu('s_lshl_b32', S_T3, S_HEAD, 8)
    a.salu('s_lshl_b32', S_F, S_J, 4)
    a.salu('s_add_u32', S_F, S_F, LDS_FLG)
    a.valu('v_mov_b32', V_FA, S_F)
    a.wait(lgkm=0)
    stamp(1)
    a.salu('s_mov_b32', 'm0', S_T2)
    for i in range(4):
        if not opts.get('noom', 0):
            a.vmem_load('buffer_load_dwordx4', None, v(VO[i]), srd(SRD_OM), S_T2, offset=1024 * i, lds=True)
    if opts.get('vtouch', 0):
        a.vmem_load('buffer_load_dword', 'v60', None, srd(SRD_V), S_KOFF, flags=ntf)
    a.scmp('s_cmp_lg_u32', S_WAVE, 0)
    a.branch('s_cbranch_scc1', 'L_noq')
    a.salu('s_mov_b32', 'm0', LDS_Q)
    a.vmem_load('buffer_load_dwordx4', None, 'v19', srd(SRD_Q), S_T3, lds=True)
    a.label('L_noq')

    def group(gi):
        if gi < 8:
            a.salu('s_add_u32', S_T0, S_KLDS, 4096 * gi)
            a.salu('s_mov_b32', 'm0', S_T0)
            a.salu('s_xor_b32' if GX else 's_add_u32', S_T1, S_KOFF, gplace(gi))
            for i in range(4):
                a.vmem_load('buffer_load_dwordx4', None, v(VO[i]), srd(SRD_K), S_T1, offset=1024 * i, flags=ntf, lds=True)
        else:
            q4 = gi - 8
            a.salu('s_xor_b32' if GX else 's_add_u32', S_T1, S_KOFF, gplace(q4))
            for t in range(4 * q4, 4 * q4 + 4):
                a.vmem_load('buffer_load_dwordx4', vr(VD + 4 * t, 4), V_VV, srd(SRD_V), S_T1, offset=1024 * (t % 4), flags=ntf)

    def signal(off, val):
        a.salu('s_mov_b64', 'exec', 1)
        a.valu('v_mov_b32', V_S, val)
        a.ds_write('ds_write_b32', V_FA, V_S, offset=off)
        a.salu('s_mov_b64', 'exec', -1)

    S_LAST = 's62'
    nchk = [0]
    def check(issued):
        k = nchk[0]; nchk[0] += 1
        if opts.get('nochk', 0) and issued < 64:
            return
        a.scmp('s_cmp_ge_i32', S_LAST, 9)
        a.branch('s_cbranch_scc1', f'L_chk{k}')
        a.salu('s_getreg_b32', S_T2, 'hwreg(HW_REG_IB_STS)')
        a.salu('s_and_b32', S_T3, S_T2, 15)
        a.salu('s_bfe_u32', S_T2, S_T2, hex(22 | (2 << 16)))
        a.salu('s_lshl_b32', S_T2, S_T2, 4)
        a.salu('s_or_b32', S_T3, S_T3, S_T2)
        a.salu('s_sub_i32', S_T3, issued + 4, S_T3)
        a.salu('s_ashr_i32', S_T3, S_T3, 2)
        a.salu('s_min_i32', S_T3, S_T3, 9)
        a.scmp('s_cmp_le_i32', S_T3, S_LAST)
        a.branch('s_cbranch_scc1', f'L_chk{k}')
        a.salu('s_mov_b32', S_LAST, S_T3)
        signal(0, S_LAST)
        a.label(f'L_chk{k}')
    a.salu('s_mov_b32', S_LAST, 0)
    for gi in range(PRE):
        group(gi)
    a.other('s_barrier')
    stamp(2)
    for gi in range(PRE, 16):
        group(gi)
        check(4 * (gi + 1))
        if gi == 7: stamp(3)
    stamp(4)
    a.label('L_drain')
    check(64)
    a.scmp('s_cmp_ge_i32', S_LAST, 9)
    a.branch('s_cbranch_scc0', 'L_drain')
    stamp(5)
    a.valu('v_and_b32', 'v8', 1, V_N)
    a.valu('v_mov_b32', 'v9', '0xffff')
    a.valu('v_mov_b32', 'v10', '0xffff0000')
    a.vcmp('v_cmp_eq_u32', 'vcc', 1, 'v8')
    a.valu('v_cndmask_b32', 'v9', 'v9', 'v10', 'vcc')
    a.valu('v_bfe_u32', 'v8', V_N, 1, 2)
    for r in range(4):
        a.vcmp('v_cmp_eq_u32', 'vcc', r, 'v8')
        a.valu('v_cndmask_b32', v(PVM + r), 0, 'v9', 'vcc')
    a.salu('s_lshl_b32', S_T0, S_J, 10)
    a.salu('s_add_u32', S_T1, S_T0, LDS_WX)
    a.valu('v_lshl_add_u32', 'v10', V_N, 2, V_G)
    a.valu('v_lshl_add_u32', 'v10', 'v10', 3, S_T1)
    a.salu('s_add_u32', S_T1, S_T0, LDS_RED)
    a.valu('v_lshl_add_u32', 'v11', V_LANE, 4, S_T1)
    a.label('L_wpoll')
    a.ds_read('ds_read_b32', 'v8', V_FA, offset=8)
    a.wait(lgkm=0)
    a.valu('v_readfirstlane_b32', S_T0, 'v8')
    a.scmp('s_cmp_lg_u32', S_T0, 0)
    a.branch('s_cbranch_scc1', 'L_wready')
    a.other(f's_sleep {SLEEP}')
    a.salu('s_add_u32', 's58', 's58', 1)
    a.scmp('s_cmp_lt_u32', 's58', 0x80000)
    a.branch('s_cbranch_scc1', 'L_wpoll')
    a.label('L_wready')
    a.ds_read('ds_read_b64', vr(PX, 2), 'v10')
    a.ds_read('ds_read_b64', vr(PX + 2, 2), 'v10', offset=512)
    a.wait(lgkm=0)
    stamp(6)
    def build(t):
        b = B3 + 4 * (t % 4)
        tmp = TT[t % 4]
        ph, pl = PX + 2 * (t // 16), PX + 2 * (t // 16) + 1
        a.valu('v_mov_b32_dpp', v(tmp), v(ph), mods=f'row_newbcast:{t % 16} row_mask:0xf bank_mask:0x3', dpp=True)
        a.valu('v_mov_b32_dpp', v(tmp), v(pl), mods=f'row_newbcast:{t % 16} row_mask:0xf bank_mask:0xc', dpp=True)
        for r in range(4):
            a.valu('v_and_b32', v(b + r), v(tmp), v(PVM + r))
    build(0); build(1)
    for t in range(32):
        if t + 2 < 32:
            build(t + 2)
        a.wait(vm=31 - t)
        if t in (0, 31): stamp()
        a.mfma('16x16x32', vr(D3, 4), vr(VD + 4 * t, 4), vr(B3 + 4 * (t % 4), 4), 0 if t == 0 else vr(D3, 4))
    a.ds_write('ds_write_b128', 'v11', vr(D3, 4))
    a.wait(lgkm=0)
    signal(12, 1)
    stamp()
    NL = nst[0]
    a.branch('s_branch', 'L_end_l')

    a.label('L_compute')
    RA = [4, 5, 6, 7]; RK8 = [8, 9, 10, 11]
    V_FA, VQ = 'v12', 'v13'
    WA = [14, 15]
    CEPS, MASK, NEGH, IDA = 16, 20, 22, 24
    VHI, VLOG2E = 'v26', 'v27'
    AS = 28
    A2, Q, CQ = 32, 40, 48
    T = [52, 53, 54, 55]
    W2 = 56
    G = [64, 68]
    SD = 72
    KS = 84
    E = 100
    D1 = [116, 132]
    RAW = 148
    OM = 192
    EIGHTH, C1E6 = 180, 184
    X = [182, 183, 188, 189, 190, 191]

    a.other('s_setprio 2')
    a.scmp('s_cmp_eq_u32', S_WAVE, 4)
    a.salu('s_cselect_b32', S_CNT, S_SPLIT, 0)
    for i in range(4):
        a.valu('v_mov_b32', v(W2 + 4 + i), -1)
    a.valu('v_lshlrev_b32', 'v19', 4, V_LANE)
    for i in range(4):
        a.valu('v_mov_b32', v(W2 + i), 0)
    a.salu('s_lshl_b32', S_F, S_J, 4)
    a.salu('s_add_u32', S_F, S_F, LDS_FLG)
    a.valu('v_mov_b32', V_FA, S_F)
    a.salu('s_mov_b64', 'exec', 1)
    a.ds_write('ds_write_b128', V_FA, vr(W2, 4))
    a.salu('s_mov_b64', 'exec', -1)
    a.wait(lgkm=0)
    a.scmp('s_cmp_eq_u32', S_CNT, 0)
    a.branch('s_cbranch_scc1', 'L_noclear')
    a.vmem_store('buffer_store_dwordx4', vr(W2 + 4, 4), 'v19', srd(SRD_WS), S_SLOT, flags='sc1')
    a.label('L_noclear')
    a.other('s_barrier')
    stamp(1)
    if opts.get('nocompute', 0):
        a.salu('s_mov_b64', 'exec', 1)
        a.valu('v_mov_b32', v(X[1]), 1)
        a.ds_write('ds_write_b32', V_FA, v(X[1]), offset=8)
        a.salu('s_mov_b64', 'exec', -1)
        a.wait(lgkm=0)
        nst[0] = 9
        a.branch('s_branch', 'L_idle')
    a.valu('v_lshl_or_b32', v(RA[0]), V_N, 8, 'v14')
    for i in range(1, 4):
        a.valu('v_xor_b32', v(RA[i]), i << 6, v(RA[0]))
    a.valu('v_mov_b32', VHI, '0xffff0000')
    a.valu('v_mov_b32', VLOG2E, hex(f32bits(1.4426950408889634)))
    a.valu('v_lshrrev_b32', v(T[0]), 2, V_N)
    a.valu('v_and_b32', v(T[1]), 3, V_N)
    a.valu('v_and_b32', v(T[2]), 1, V_N)
    a.valu('v_mov_b32', v(T[3]), '0xffff')
    a.vcmp('v_cmp_eq_u32', 'vcc', 1, v(T[2]))
    a.valu('v_cndmask_b32', v(T[3]), v(T[3]), VHI, 'vcc')
    a.vcmp('v_cmp_eq_u32', 'vcc', V_G, v(T[0]))
    a.valu('v_cndmask_b32', v(T[3]), 0, v(T[3]), 'vcc')
    a.vcmp('v_cmp_gt_u32', 'vcc', 2, v(T[1]))
    a.valu('v_cndmask_b32', v(MASK), 0, v(T[3]), 'vcc')
    a.valu('v_cndmask_b32', v(MASK + 1), v(T[3]), 0, 'vcc')
    a.valu('v_and_b32', v(IDA), '0x3f803f80', v(MASK))
    a.valu('v_and_b32', v(IDA + 1), '0x3f803f80', v(MASK + 1))
    a.valu('v_and_b32', v(EIGHTH), '0x3e003e00', v(MASK))
    a.valu('v_and_b32', v(EIGHTH + 1), '0x3e003e00', v(MASK + 1))
    a.valu('v_and_b32', v(AS), '0x3e983e98', v(MASK))
    a.valu('v_and_b32', v(AS + 1), '0x3e983e98', v(MASK + 1))
    a.valu('v_and_b32', v(AS + 2), '0x39e039e0', v(MASK))
    a.valu('v_and_b32', v(AS + 3), '0x39e039e0', v(MASK + 1))
    a.valu('v_mov_b32', v(NEGH), '0xbf00bf00')
    a.valu('v_mov_b32', v(NEGH + 1), '0xbf00bf00')
    for i in range(4):
        a.valu('v_mov_b32', v(C1E6 + i), hex(EPS_BITS))
    a.valu('v_lshlrev_b32', VQ, 4, V_G)
    a.valu('v_add_u32', VQ, LDS_Q, VQ)
    a.valu('v_and_b32', v(X[0]), 3, V_LANE)
    a.valu('v_lshlrev_b32', v(X[0]), 4, v(X[0]))
    a.valu('v_add_u32', v(X[0]), LDS_FLG, v(X[0]))
    for u in range(4):
        a.valu('v_add_u32', v(RK8[u]), S_KLDS, v(RA[u]))
    a.label('L_ompoll')
    a.ds_read('ds_read_b32', v(X[1]), v(X[0]))
    a.wait(lgkm=0)
    a.vcmp('v_cmp_eq_u32', 'vcc', 0, v(X[1]))
    a.branch('s_cbranch_vccz', 'L_omready')
    a.other(f's_sleep {SLEEP}')
    a.salu('s_add_u32', 's58', 's58', 1)
    a.scmp('s_cmp_lt_u32', 's58', 0x80000)
    a.branch('s_cbranch_scc1', 'L_ompoll')
    a.label('L_omready')
    stamp(2)
    for u in range(4):
        for h in range(2):
            p = 2 * u + h
            a.emit(Ins(f'ds_read2_b64 {vr(RAW + 4 * p, 4)}, {VQ} offset0:{8*u+h} offset1:{8*u+h}', 'ds', _regs(VQ), _regs(vr(RAW + 4 * p, 4))))
    for tm in range(4):
        for u in range(4):
            a.ds_read('ds_read_b128', vr(OM + 16 * tm + 4 * u, 4), v(RA[u]), offset=LDS_OM + 4096 * tm)
    for u in range(4):
        a.valu('v_mov_b32', v(RA[u]), v(RK8[u]))
        a.valu('v_add_u32', v(RK8[u]), 8, v(RK8[u]))
    RK = RA

    def cvt(dst, src, tm):
        a.valu('v_cvt_pk_bf16_f32', v(dst + 2 * tm), v(src + 4 * tm), v(src + 4 * tm + 1))
        a.valu('v_cvt_pk_bf16_f32', v(dst + 2 * tm + 1), v(src + 4 * tm + 2), v(src + 4 * tm + 3))

    def front(b):
        g, d1 = G[b], D1[b]
        for p in range(8):
            sd = SD + 4 * (p % 3)
            a.mfma('16x16x32', vr(sd, 4), vr(AS, 4), vr(RAW + 4 * p, 4), 0)
            a.valu('v_cvt_pk_bf16_f32', v(KS + 2 * p), v(sd), v(sd + 1))
            a.valu('v_cvt_pk_bf16_f32', v(KS + 2 * p + 1), v(sd + 2), v(sd + 3))
            if p % 2 == 1:
                u = p // 2
                f = vr(KS + 4 * u, 4)
                a.mfma('16x16x32', vr(g, 4), f, f, 0 if u == 0 else vr(g, 4))
                for tm in range(4):
                    a.mfma('16x16x32', vr(d1 + 4 * tm, 4), vr(OM + 16 * tm + 4 * u, 4), f, 0 if u == 0 else vr(d1 + 4 * tm, 4))

    def back(b, qdst, is_q):
        g, d1 = G[b], D1[b]
        a.valu('v_cvt_pk_bf16_f32', v(T[0]), v(g), v(g + 1))
        a.valu('v_cvt_pk_bf16_f32', v(T[1]), v(g + 2), v(g + 3))
        a.valu('v_and_b32', v(T[0]), v(T[0]), v(MASK))
        a.valu('v_and_b32', v(T[1]), v(T[1]), v(MASK + 1))
        a.mfma('16x16x16', vr(CQ, 4), vr(NEGH, 2), vr(T[0], 2), 0)
        for tm in range(4):
            cvt(qdst, d1, tm)
        for tm in range(4):
            a.mfma('16x16x16', vr(E + 4 * tm, 4), vr(IDA, 2), vr(qdst + 2 * tm, 2), vr(CQ, 4))
        for tm in range(4):
            cvt(qdst, E, tm)
        for tm in range(4):
            for h in range(2):
                x = qdst + 2 * tm + h
                d0, dd1 = d1 + 4 * tm + 2 * h, d1 + 4 * tm + 2 * h + 1
                a.valu('v_lshlrev_b32', v(d0), 16, v(x))
                a.valu('v_and_b32', v(dd1), VHI, v(x))
                a.valu('v_mul_f32', v(d0), VLOG2E, v(d0))
                a.valu('v_mul_f32', v(dd1), VLOG2E, v(dd1))
                a.valu('v_exp_f32', v(d0), v(d0))
                a.valu('v_exp_f32', v(dd1), v(dd1))
        for tm in range(4):
            cvt(qdst, d1, tm)
        if is_q:
            for tm in range(4):
                a.mfma('16x16x16', vr(E + 4 * tm, 4), vr(EIGHTH, 2), vr(qdst + 2 * tm, 2), vr(C1E6, 4))
            for tm in range(4):
                cvt(qdst, E, tm)
            for i in range(4):
                a.valu('v_mov_b32', v(E + i), '0x3f803f80')
            a.mfma('16x16x32', vr(CEPS, 4), vr(A2, 4), vr(E, 4), 0)
            a.mfma('16x16x32', vr(CEPS, 4), vr(A2 + 4, 4), vr(E, 4), vr(CEPS, 4))
            for i in range(8):
                a.valu('v_subrev_u32', v(A2 + i), '0x01800180', v(A2 + i))
            a.valu('v_mov_b32', v(T[2]), hex(EPS_BITS))
            for i in range(4):
                a.valu('v_mul_f32', v(CEPS + i), v(T[2]), v(CEPS + i))

    def wfin(tk):
        w2 = W2 + 4 * (tk & 1)
        a.mfma('16x16x32', vr(w2, 4), vr(A2, 4), vr(Q, 4), vr(CEPS, 4))
        a.mfma('16x16x32', vr(w2, 4), vr(A2 + 4, 4), vr(Q + 4, 4), vr(w2, 4))
        a.valu('v_mov_b32_dpp', v(WA[tk // 4]), v(w2), mods=f'quad_perm:[0,1,2,3] row_mask:{hex(1 << (tk % 4))} bank_mask:0xf', dpp=True)

    def kpoll_read(tk):
        a.label(f'L_kpoll{tk}')
        a.ds_read('ds_read_b32', v(X[1]), V_FA)
        a.wait(lgkm=0)
        a.valu('v_readfirstlane_b32', S_T0, v(X[1]))
        a.scmp('s_cmp_gt_u32', S_T0, tk + 1)
        a.branch('s_cbranch_scc1', f'L_kready{tk}')
        a.other(f's_sleep {SLEEP}')
        a.salu('s_add_u32', 's58', 's58', 1)
        a.scmp('s_cmp_lt_u32', 's58', 0x80000)
        a.branch('s_cbranch_scc1', f'L_kpoll{tk}')
        a.label(f'L_kready{tk}')
        for u in range(4):
            for h in range(2):
                p = 2 * u + h
                addr = v(RK[u]) if h == 0 else v(RK8[u])
                a.emit(Ins(f'ds_read2st64_b64 {vr(RAW + 4 * p, 4)}, {addr} offset0:{8*tk} offset1:{8*tk}', 'ds', _regs(addr), _regs(vr(RAW + 4 * p, 4))))

    a.begin()
    a.wait_for([vr(RAW, 32), vr(OM, 64)], lgkm=0)
    front(1)
    a.end(VERB)
    stamp(3)
    for tk in range(8):
        kpoll_read(tk)
        if tk in (0, 1, 4, 7): stamp()
        a.begin()
        if tk == 0:
            back(1, A2, True)
        else:
            back((tk - 1) & 1, Q, False)
            wfin(tk - 1)
        a.wait_for([vr(RAW, 32)], lgkm=0)
        front(tk & 1)
        a.end(VERB)
        if tk == 0:
            a.scmp('s_cmp_eq_u32', S_CNT, 0)
            a.branch('s_cbranch_scc1', 'L_noflag')
            a.wait(vm=0)
            a.salu('s_mov_b64', 'exec', 1)
            a.valu('v_mov_b32', v(X[1]), 1)
            a.salu('s_lshl_b32', S_T0, S_HEAD, 2)
            a.vmem_store('buffer_atomic_add', v(X[1]), None, srd(SRD_DBG), S_T0, flags='sc1')
            a.salu('s_mov_b64', 'exec', -1)
            a.label('L_noflag')
    a.begin()
    back(1, Q, False)
    wfin(7)
    for h in range(2):
        a.valu('v_cvt_pk_bf16_f32', v(E + 2 * h), v(WA[h]), v(WA[h]))
        a.valu('v_and_b32', v(T[h]), VHI, v(E + 2 * h))
        a.valu('v_sub_f32', v(T[h]), v(WA[h]), v(T[h]))
        a.valu('v_cvt_pk_bf16_f32', v(E + 2 * h + 1), v(T[h]), v(T[h]))
    a.valu('v_add_f32', v(T[2]), v(WA[0]), v(WA[1]))
    for sh in (8, 4, 2, 1):
        a.valu('v_add_f32_dpp', v(T[2]), v(T[2]), v(T[2]), mods=f'row_ror:{sh} row_mask:0xf bank_mask:0xf', dpp=True)
    a.salu('s_lshl_b32', S_T0, S_J, 10)
    a.salu('s_add_u32', S_T0, S_T0, LDS_WX)
    a.valu('v_lshl_add_u32', v(X[0]), V_LANE, 3, S_T0)
    a.ds_write('ds_write_b64', v(X[0]), vr(E, 2))
    a.ds_write('ds_write_b64', v(X[0]), vr(E + 2, 2), offset=512)
    a.salu('s_lshl_b32', S_T1, S_J, 4)
    a.salu('s_add_u32', S_T1, S_T1, LDS_DEN)
    a.valu('v_lshl_add_u32', v(T[3]), V_G, 2, S_T1)
    a.ds_write('ds_write_b32', v(T[3]), v(T[2]))
    a.end(VERB)
    a.wait(lgkm=0)
    a.salu('s_mov_b64', 'exec', 1)
    a.valu('v_mov_b32', v(X[1]), 1)
    a.ds_write('ds_write_b32', V_FA, v(X[1]), offset=8)
    a.salu('s_mov_b64', 'exec', -1)
    stamp()
    a.scmp('s_cmp_ge_u32', S_WAVE, 6)
    a.branch('s_cbranch_scc1', 'L_idle')
    V_D, RED_R, V_D8, NUM, DEN, FLAG, TT2, SUMN = 4, 5, 6, 7, 8, 9, 10, 11
    DS = 116
    a.valu('v_subrev_u32', v(V_D), 256, V_TID)
    a.valu('v_lshrrev_b32', v(V_D8), 5, v(V_D))
    a.valu('v_and_b32', v(TT2), 7, v(V_D))
    a.valu('v_lshl_add_u32', v(V_D8), v(V_D8), 4, v(TT2))
    a.valu('v_bfe_u32', v(TT2), v(V_D), 3, 2)
    a.valu('v_lshlrev_b32', v(TT2), 2, v(TT2))
    a.valu('v_lshl_add_u32', v(RED_R), v(V_D8), 4, v(TT2))
    a.valu('v_add_u32', v(RED_R), LDS_RED, v(RED_R))
    a.valu('v_lshlrev_b32', v(V_D8), 3, v(V_D))
    a.valu('v_and_b32', v(X[0]), 3, V_LANE)
    a.valu('v_lshlrev_b32', v(X[0]), 4, v(X[0]))
    a.valu('v_add_u32', v(X[0]), LDS_FLG, v(X[0]))
    a.label('L_denpoll')
    a.ds_read('ds_read_b32', v(X[1]), v(X[0]), offset=8)
    a.wait(lgkm=0)
    a.vcmp('v_cmp_ne_u32', 'vcc', 1, v(X[1]))
    a.branch('s_cbranch_vccz', 'L_denready')
    a.other(f's_sleep {SLEEP}')
    a.salu('s_add_u32', 's58', 's58', 1)
    a.scmp('s_cmp_lt_u32', 's58', 0x80000)
    a.branch('s_cbranch_scc1', 'L_denpoll')
    a.label('L_denready')
    a.valu('v_mov_b32', v(X[0]), LDS_DEN)
    for i in range(4):
        a.ds_read('ds_read_b128', vr(DS + 4 * i, 4), v(X[0]), offset=16 * i)
    a.wait(lgkm=0)
    for st in (8, 4, 2):
        for i in range(st):
            a.valu('v_add_f32', v(DS + i), v(DS + i), v(DS + i + st))
    a.valu('v_add_f32', v(DEN), v(DS), v(DS + 1))
    a.valu('v_and_b32', v(X[0]), 3, V_LANE)
    a.valu('v_lshlrev_b32', v(X[0]), 4, v(X[0]))
    a.valu('v_add_u32', v(X[0]), LDS_FLG, v(X[0]))
    def own_num():
        for i in range(8):
            a.ds_read('ds_read_b32', v(DS + i), v(RED_R), offset=1024 * (i >> 1) + 128 * (i & 1))
        a.wait(lgkm=0)
        for st in (4, 2):
            for i in range(st):
                a.valu('v_add_f32', v(DS + i), v(DS + i), v(DS + i + st))
        a.valu('v_add_f32', v(NUM), v(DS), v(DS + 1))
    def pv_wait(tag):
        a.label(f'L_pv{tag}')
        a.ds_read('ds_read_b32', v(X[1]), v(X[0]), offset=12)
        a.wait(lgkm=0)
        a.vcmp('v_cmp_ne_u32', 'vcc', 1, v(X[1]))
        a.branch('s_cbranch_vccz', f'L_pvok{tag}')
        a.salu('s_add_u32', 's58', 's58', 1)
        a.scmp('s_cmp_lt_u32', 's58', 0x100000)
        a.branch('s_cbranch_scc1', f'L_pv{tag}')
        a.label(f'L_pvok{tag}')
    a.scmp('s_cmp_eq_u32', S_SPLIT, 0)
    a.branch('s_cbranch_scc1', 'L_consumer')
    pv_wait('P')
    stamp()
    own_num()
    a.valu('v_min_u32', v(DS), -2, v(NUM))
    a.valu('v_min_u32', v(DS + 1), -2, v(DEN))
    a.vmem_store('buffer_store_dwordx2', vr(DS, 2), v(V_D8), srd(SRD_WS), S_SLOT, flags='sc1')
    a.branch('s_branch', 'L_end_c')
    a.label('L_consumer')
    a.salu('s_mov_b32', S_T1, 0)
    a.salu('s_lshl_b32', S_T0, S_HEAD, 2)
    a.other('s_setprio 3')
    a.label('L_flagloop')
    a.vmem_load('buffer_load_dword', v(FLAG), None, srd(SRD_DBG), S_T0, flags='sc1')
    a.wait(vm=0)
    a.vcmp('v_cmp_gt_u32', 'vcc', 7, v(FLAG))
    a.branch('s_cbranch_vccz', 'L_flagok')
    a.salu('s_add_u32', S_T1, S_T1, 1)
    a.scmp('s_cmp_gt_u32', S_T1, 0x40000)
    a.branch('s_cbranch_scc0', 'L_flagloop')
    a.label('L_flagok')
    NR = opts.get('rounds', 3)
    PB_ = [132, 148, 164, 84]
    S_ND = S_T3
    a.salu('s_mov_b32', S_T1, 0)
    a.salu('s_mov_b32', S_ND, 0)
    def issue_round(r):
        for j in range(1, 8):
            a.salu('s_add_u32', S_T2, S_SLOT, 1024 * j)
            a.vmem_load('buffer_load_dwordx2', vr(PB_[r] + 2 * j, 2), v(V_D8), srd(SRD_WS), S_T2, flags='sc1')
    for r in range(NR):
        issue_round(r)
        if r < NR - 1 and opts.get('rsleep', 6):
            a.other(f"s_sleep {opts.get('rsleep', 6)}")
    a.label('L_pollloop')
    for r in range(NR):
        B = PB_[r]
        a.wait(vm=7 * (NR - 1))
        a.valu('v_max3_u32', v(TT2), v(B + 2), v(B + 3), v(B + 4))
        for k in range(5):
            a.valu('v_max3_u32', v(TT2), v(TT2), v(B + 5 + 2 * k), v(B + 6 + 2 * k))
        a.valu('v_max_u32', v(TT2), v(TT2), v(B + 15))
        a.vcmp('v_cmp_eq_u32', 'vcc', -1, v(TT2))
        a.branch('s_cbranch_vccz', f'L_done{r}')
        issue_round(r)
        a.scmp('s_cmp_lg_u32', S_ND, 0)
        a.branch('s_cbranch_scc1', f'L_nd{r}')
        a.ds_read('ds_read_b32', v(X[1]), v(X[0]), offset=12)
        a.wait(lgkm=0)
        a.vcmp('v_cmp_ne_u32', 'vcc', 1, v(X[1]))
        a.branch('s_cbranch_vccnz', f'L_nd{r}')
        own_num()
        a.salu('s_mov_b32', S_ND, 1)
        a.label(f'L_nd{r}')
    a.salu('s_add_u32', S_T1, S_T1, 1)
    a.scmp('s_cmp_gt_u32', S_T1, 0x20000)
    a.branch('s_cbranch_scc0', 'L_pollloop')
    for r in range(NR):
        B = PB_[r]
        a.label(f'L_done{r}')
        a.valu('v_add_f32', v(SUMN), v(B + 2), v(B + 4))
        a.valu('v_add_f32', v(DEN), v(DEN), v(B + 3))
        for j in range(2, 8):
            if j > 2: a.valu('v_add_f32', v(SUMN), v(SUMN), v(B + 2 * j))
            a.valu('v_add_f32', v(DEN), v(DEN), v(B + 2 * j + 1))
        if r < NR - 1:
            a.branch('s_branch', 'L_fin')
    a.label('L_fin')
    a.scmp('s_cmp_lg_u32', S_ND, 0)
    a.branch('s_cbranch_scc1', 'L_fin2')
    pv_wait('C')
    own_num()
    a.label('L_fin2')
    stamp()
    a.valu('v_add_f32', v(NUM), v(NUM), v(SUMN))
    a.valu('v_add_f32', v(DEN), hex(EPS_BITS), v(DEN))
    a.valu('v_rcp_f32', v(TT2), v(DEN))
    a.valu('v_mul_f32', v(NUM), v(NUM), v(TT2))
    a.valu('v_cvt_pk_bf16_f32', v(NUM), v(NUM), v(NUM))
    a.salu('s_lshl_b32', S_T0, S_HEAD, 8)
    a.valu('v_lshlrev_b32', v(TT2), 1, v(V_D))
    a.vmem_store('buffer_store_short', v(NUM), v(TT2), srd(SRD_OUT), S_T0)
    a.branch('s_branch', 'L_end_c')
    a.label('L_idle')
    a.label('L_end_c')
    stamp()
    a.label('L_end_l')
    dump_stamps(max(NL, nst[0]))
    a.label('L_end')
    a.other('s_endpgm')

    hdr = open('standalone__linear_kernel_rfa__decode.s.ref').read().split('\n')
    head_comments = [l for l in hdr if l.startswith(';') and '@launch' not in l and 'Override' not in l and 'grid=ceil' not in l]
    txt = '\n'.join(head_comments) + '\n'
    txt += f'; @launch grid=(256,1,1) block=(512,1,1) lds={LDS_TOTAL}\n'
    txt += '.amdgcn_target "amdgcn-amd-amdhsa--gfx950"\n.text\n'
    txt += f'.globl {KNAME}\n.p2align 8\n.type {KNAME},@function\n{KNAME}:\n'
    txt += a.text()
    txt += f'''.section .rodata,"a"
.p2align 6
.amdhsa_kernel {KNAME}
  .amdhsa_next_free_vgpr 256
  .amdhsa_next_free_sgpr 102
  .amdhsa_accum_offset 256
  .amdhsa_group_segment_fixed_size 0
  .amdhsa_kernarg_size 56
  .amdhsa_user_sgpr_count 2
  .amdhsa_user_sgpr_kernarg_segment_ptr 1
  .amdhsa_system_sgpr_workgroup_id_x 1
  .amdhsa_float_denorm_mode_32 3
.end_amdhsa_kernel
'''
    return txt, a

if __name__ == '__main__':
    out = sys.argv[1]
    opts = {}
    for kv in sys.argv[2:]:
        k, val = kv.split('=')
        opts[k] = int(val, 0)
    txt, a = gen(opts)
    open(out, 'w').write(txt)
    print('instructions', a.count, 'nop states', a.nops)
```

```python
import sys
import numpy as np
from asmlib import SAsm, Ins, _regs

def f32bits(x):
    return int(np.float32(x).view(np.uint32))

ARRS = ['j0,j1,g0,g1,g2,s0,s1,s2', 'j0,j1,s0,g0,s1,g1,s2,g2', 'j0,j1,s0,g0,g1,g2,s1,s2', 's0,j0,j1,g0,g1,g2,s1,s2', 'g0,g1,g2,j0,j1,s0,s1,s2']
KNAME = 'standalone__linear_kernel_rfa__decode_kernel'

def gen(opts):
    NT = opts.get('nt', 1)
    DEPTH = opts.get('depth', 3)
    PRE = opts.get('pre', 2)
    STAMPS = opts.get('stamps', 0)
    DBGT = opts.get('dbgt', 0)
    COFF = 128 if DBGT else 0
    VERB = opts.get('verbose', 0)
    SLEEP = opts.get('sleep', 1)
    EPS_BITS = 0x35860000
    a = SAsm()
    nst = [0]
    def stamp(i=None):
        if STAMPS:
            if i is None:
                i = nst[0]
            nst[0] = i + 1
            assert 64 + 2 * i + 1 <= 101
            a.emit(Ins(f's_memrealtime s[{64+2*i}:{65+2*i}]', 'other'))
    def dump_stamps(n):
        if not STAMPS: return
        a.wait(lgkm=0)
        a.salu('s_mov_b64', 'exec', -1)
        a.valu('v_mov_b32', 'v100', 0)
        for i in range(n):
            a.valu('v_writelane_b32', 'v100', f's{64+2*i}', i, rmw=True)
        a.salu('s_getreg_b32', 's52', 'hwreg(HW_REG_XCC_ID)')
        a.valu('v_writelane_b32', 'v100', 's52', 31, rmw=True)
        a.salu('s_lshl_b32', 's52', 's2', 3)
        a.salu('s_add_u32', 's52', 's52', 's50')
        a.salu('s_lshl_b32', 's52', 's52', 7)
        a.salu('s_add_u32', 's52', 's52', 0x80000)
        a.valu('v_lshlrev_b32', 'v101', 2, 'v1')
        a.vcmp('v_cmp_gt_u32', 'vcc', 32, 'v1')
        a.salu('s_and_b64', 'exec', 'exec', 'vcc')
        a.vmem_store('buffer_store_dword', 'v100', 'v101', 's[36:39]', 's52')
        a.salu('s_mov_b64', 'exec', -1)

    LDS_OM = 0
    LDS_K = 16384
    LDS_RED = 16384 + 4 * 32768
    LDS_WX = LDS_RED + 4096
    LDS_DEN = LDS_WX + 4096
    LDS_FLG = LDS_DEN + 64
    LDS_Q = LDS_FLG + 192
    LDS_TOTAL = LDS_Q + 1024

    SRD_K, SRD_V, SRD_OM, SRD_Q, SRD_WS, SRD_DBG, SRD_OUT = 20, 24, 28, 32, 36, 40, 44
    def srd(b): return f's[{b}:{b+3}]'
    S_HEAD, S_SPLIT, S_WAVE, S_KOFF = 's48', 's49', 's50', 's51'
    S_T0, S_T1, S_T2, S_T3 = 's52', 's53', 's54', 's55'
    S_J, S_F = 's56', 's57'
    S_KLDS, S_CNT, S_SLOT = 's59', 's60', 's61'
    def v(i): return f'v{i}'
    def vr(i, n): return f'v[{i}:{i+n-1}]'
    ntf = 'nt' if NT else ''
    V_TID, V_LANE, V_G, V_N = 'v0', 'v1', 'v2', 'v3'

    a.scmp('s_cmp_ge_u32', 's2', 256)
    a.branch('s_cbranch_scc1', 'L_end')
    if STAMPS:
        for i in range(66, 102, 2):
            a.salu('s_mov_b64', f's[{i}:{i+1}]', 0)
    if DBGT:
        a.emit(Ins('s_memrealtime s[4:5]', 'other'))
    stamp(0)
    a.salu('s_load_dwordx2', f's[{SRD_OM}:{SRD_OM+1}]', 's[0:1]', 24)
    a.salu('s_load_dwordx2', f's[{SRD_K}:{SRD_K+1}]', 's[0:1]', 8)
    a.salu('s_load_dwordx2', f's[{SRD_Q}:{SRD_Q+1}]', 's[0:1]', 0)
    a.salu('s_load_dwordx2', f's[{SRD_V}:{SRD_V+1}]', 's[0:1]', 16)
    a.salu('s_load_dwordx2', f's[{SRD_WS}:{SRD_WS+1}]', 's[0:1]', 48)
    a.salu('s_load_dwordx2', f's[{SRD_DBG}:{SRD_DBG+1}]', 's[0:1]', 40)
    a.salu('s_load_dwordx2', f's[{SRD_OUT}:{SRD_OUT+1}]', 's[0:1]', 32)
    a.valu('v_lshrrev_b32', 'v13', 6, V_TID)
    a.valu('v_and_b32', V_LANE, 63, V_TID)
    a.valu('v_readfirstlane_b32', S_WAVE, 'v13')
    a.valu('v_lshrrev_b32', V_G, 4, V_LANE)
    a.valu('v_and_b32', V_N, 15, V_LANE)
    DEC = opts.get('dec', 2)
    if DEC == 1:
        a.salu('s_lshr_b32', S_HEAD, 's2', 3)
        a.salu('s_and_b32', S_SPLIT, 's2', 7)
    elif DEC == 0:
        a.salu('s_and_b32', S_HEAD, 's2', 31)
    else:
        a.salu('s_and_b32', S_HEAD, 's2', 7)
        a.salu('s_lshl_b32', S_HEAD, S_HEAD, 2)
        a.salu('s_bfe_u32', S_T0, 's2', '0x20003')
        a.salu('s_or_b32', S_HEAD, S_HEAD, S_T0)
    if DEC != 1:
        a.salu('s_lshr_b32', S_SPLIT, 's2', 5)
    for b, size in ((SRD_OM, 16384), (SRD_K, 1 << 25), (SRD_Q, 8192), (SRD_V, 1 << 25), (SRD_WS, 1 << 20), (SRD_DBG, 256), (SRD_OUT, 8192)):
        a.salu('s_mov_b32', f's{b+2}', hex(size))
        a.salu('s_mov_b32', f's{b+3}', '0x00020000')
    a.valu('v_xor_b32', 'v14', V_G, V_N)
    a.valu('v_lshlrev_b32', 'v14', 4, 'v14')
    a.salu('s_and_b32', S_J, S_WAVE, 3)
    a.salu('s_mov_b32', 's58', 0)
    a.salu('s_lshl_b32', S_T0, S_J, 15)
    a.salu('s_add_u32', S_KLDS, S_T0, LDS_K)
    a.salu('s_lshl_b32', S_SLOT, S_HEAD, 3)
    a.salu('s_add_u32', S_SLOT, S_SLOT, S_SPLIT)
    a.salu('s_lshl_b32', S_SLOT, S_SLOT, 10)
    a.scmp('s_cmp_ge_u32', S_WAVE, 4)
    a.branch('s_cbranch_scc1', 'L_compute')

    VO = [4, 5, 6, 7]
    V_VV, V_FA, V_S = 'v12', 'v13', 'v15'
    D3, PVM, PX = 16, 20, 24
    B3 = 32
    TT = [48, 49, 50, 51]
    VD = 128
    a.valu('v_lshl_or_b32', v(VO[0]), V_G, 8, 'v14')
    for i in range(1, 4):
        a.valu('v_xor_b32', v(VO[i]), i << 6, v(VO[0]))
    a.valu('v_lshlrev_b32', V_VV, 4, V_LANE)
    a.valu('v_lshlrev_b32', 'v19', 4, V_LANE)
    ARR = ARRS[opts.get('arr', 0)].split(',')
    a.salu('s_lshl_b32', S_KOFF, S_HEAD, 20)
    for pos, tk in enumerate(ARR):
        if tk[0] in 'sj':
            src = S_SPLIT if tk[0] == 's' else S_J
            a.salu('s_bfe_u32', S_T1, src, hex(int(tk[1]) | (1 << 16)))
            a.salu('s_lshl_b32', S_T1, S_T1, 12 + pos)
            a.salu('s_or_b32', S_KOFF, S_KOFF, S_T1)
    GX = opts.get('gx', 0)
    S_GX = 's63'
    if GX:
        gpos = [pos for pos, tk in enumerate(ARR) if tk[0] == 'g']
        assert gpos == list(range(gpos[0], gpos[0] + 3)) and [ARR[p] for p in gpos] == ['g0', 'g1', 'g2']
        a.salu('s_lshr_b32', S_T1, S_HEAD, 3 if GX == 1 else 2)
        a.salu('s_xor_b32', S_T1, S_T1, S_HEAD)
        a.salu('s_xor_b32', S_T1, S_T1, S_SPLIT)
        a.salu('s_and_b32', S_T1, S_T1, 7)
        a.salu('s_lshl_b32', S_GX, S_T1, 12 + gpos[0])
        a.salu('s_or_b32', S_KOFF, S_KOFF, S_GX)
    def gplace(g):
        x = 0
        for pos, tk in enumerate(ARR):
            if tk[0] == 'g' and (g >> int(tk[1])) & 1: x |= 1 << (12 + pos)
        return x
    a.salu('s_lshl_b32', S_T2, S_J, 12)
    a.salu('s_lshl_b32', S_T3, S_HEAD, 8)
    a.salu('s_lshl_b32', S_F, S_J, 4)
    a.salu('s_add_u32', S_F, S_F, LDS_FLG)
    a.valu('v_mov_b32', V_FA, S_F)
    a.wait(lgkm=0)
    stamp(1)
    a.salu('s_mov_b32', 'm0', S_T2)
    for i in range(4):
        if not opts.get('noom', 0):
            a.vmem_load('buffer_load_dwordx4', None, v(VO[i]), srd(SRD_OM), S_T2, offset=1024 * i, lds=True)
    if opts.get('vtouch', 0):
        a.vmem_load('buffer_load_dword', 'v60', None, srd(SRD_V), S_KOFF, flags=ntf)
    a.scmp('s_cmp_lg_u32', S_WAVE, 0)
    a.branch('s_cbranch_scc1', 'L_noq')
    a.salu('s_mov_b32', 'm0', LDS_Q)
    a.vmem_load('buffer_load_dwordx4', None, 'v19', srd(SRD_Q), S_T3, lds=True)
    a.label('L_noq')

    def group(gi):
        if gi < 8:
            a.salu('s_add_u32', S_T0, S_KLDS, 4096 * gi)
            a.salu('s_mov_b32', 'm0', S_T0)
            a.salu('s_xor_b32' if GX else 's_add_u32', S_T1, S_KOFF, gplace(gi))
            for i in range(4):
                a.vmem_load('buffer_load_dwordx4', None, v(VO[i]), srd(SRD_K), S_T1, offset=1024 * i, flags=ntf, lds=True)
        else:
            q4 = gi - 8
            a.salu('s_xor_b32' if GX else 's_add_u32', S_T1, S_KOFF, gplace(q4))
            for t in range(4 * q4, 4 * q4 + 4):
                a.vmem_load('buffer_load_dwordx4', vr(VD + 4 * t, 4), V_VV, srd(SRD_V), S_T1, offset=1024 * (t % 4), flags=ntf)

    def signal(off, val):
        a.salu('s_mov_b64', 'exec', 1)
        a.valu('v_mov_b32', V_S, val)
        a.ds_write('ds_write_b32', V_FA, V_S, offset=off)
        a.salu('s_mov_b64', 'exec', -1)

    S_LAST = 's62'
    nchk = [0]
    def check(issued):
        k = nchk[0]; nchk[0] += 1
        if opts.get('nochk', 0) and issued < 64:
            return
        a.scmp('s_cmp_ge_i32', S_LAST, 9)
        a.branch('s_cbranch_scc1', f'L_chk{k}')
        a.salu('s_getreg_b32', S_T2, 'hwreg(HW_REG_IB_STS)')
        a.salu('s_and_b32', S_T3, S_T2, 15)
        a.salu('s_bfe_u32', S_T2, S_T2, hex(22 | (2 << 16)))
        a.salu('s_lshl_b32', S_T2, S_T2, 4)
        a.salu('s_or_b32', S_T3, S_T3, S_T2)
        a.salu('s_sub_i32', S_T3, issued + 4, S_T3)
        a.salu('s_ashr_i32', S_T3, S_T3, 2)
        a.salu('s_min_i32', S_T3, S_T3, 9)
        a.scmp('s_cmp_le_i32', S_T3, S_LAST)
        a.branch('s_cbranch_scc1', f'L_chk{k}')
        a.salu('s_mov_b32', S_LAST, S_T3)
        signal(0, S_LAST)
        a.label(f'L_chk{k}')
    a.salu('s_mov_b32', S_LAST, 0)
    for gi in range(PRE):
        group(gi)
    a.other('s_barrier')
    stamp(2)
    for gi in range(PRE, 16):
        group(gi)
        check(4 * (gi + 1))
        if gi == 7: stamp(3)
    stamp(4)
    a.label('L_drain')
    check(64)
    a.scmp('s_cmp_ge_i32', S_LAST, 9)
    a.branch('s_cbranch_scc0', 'L_drain')
    stamp(5)
    a.valu('v_and_b32', 'v8', 1, V_N)
    a.valu('v_mov_b32', 'v9', '0xffff')
    a.valu('v_mov_b32', 'v10', '0xffff0000')
    a.vcmp('v_cmp_eq_u32', 'vcc', 1, 'v8')
    a.valu('v_cndmask_b32', 'v9', 'v9', 'v10', 'vcc')
    a.valu('v_bfe_u32', 'v8', V_N, 1, 2)
    for r in range(4):
        a.vcmp('v_cmp_eq_u32', 'vcc', r, 'v8')
        a.valu('v_cndmask_b32', v(PVM + r), 0, 'v9', 'vcc')
    a.salu('s_lshl_b32', S_T0, S_J, 10)
    a.salu('s_add_u32', S_T1, S_T0, LDS_WX)
    a.valu('v_lshl_add_u32', 'v10', V_N, 2, V_G)
    a.valu('v_lshl_add_u32', 'v10', 'v10', 3, S_T1)
    a.salu('s_add_u32', S_T1, S_T0, LDS_RED)
    a.valu('v_lshl_add_u32', 'v11', V_LANE, 4, S_T1)
    a.label('L_wpoll')
    a.ds_read('ds_read_b32', 'v8', V_FA, offset=8)
    a.wait(lgkm=0)
    a.valu('v_readfirstlane_b32', S_T0, 'v8')
    a.scmp('s_cmp_lg_u32', S_T0, 0)
    a.branch('s_cbranch_scc1', 'L_wready')
    a.other(f's_sleep {SLEEP}')
    a.salu('s_add_u32', 's58', 's58', 1)
    a.scmp('s_cmp_lt_u32', 's58', 0x80000)
    a.branch('s_cbranch_scc1', 'L_wpoll')
    a.label('L_wready')
    a.ds_read('ds_read_b64', vr(PX, 2), 'v10')
    a.ds_read('ds_read_b64', vr(PX + 2, 2), 'v10', offset=512)
    a.wait(lgkm=0)
    stamp(6)
    def build(t):
        b = B3 + 4 * (t % 4)
        tmp = TT[t % 4]
        ph, pl = PX + 2 * (t // 16), PX + 2 * (t // 16) + 1
        a.valu('v_mov_b32_dpp', v(tmp), v(ph), mods=f'row_newbcast:{t % 16} row_mask:0xf bank_mask:0x3', dpp=True)
        a.valu('v_mov_b32_dpp', v(tmp), v(pl), mods=f'row_newbcast:{t % 16} row_mask:0xf bank_mask:0xc', dpp=True)
        for r in range(4):
            a.valu('v_and_b32', v(b + r), v(tmp), v(PVM + r))
    build(0); build(1)
    for t in range(32):
        if t + 2 < 32:
            build(t + 2)
        a.wait(vm=31 - t)
        if t in (0, 31): stamp()
        a.mfma('16x16x32', vr(D3, 4), vr(VD + 4 * t, 4), vr(B3 + 4 * (t % 4), 4), 0 if t == 0 else vr(D3, 4))
    a.ds_write('ds_write_b128', 'v11', vr(D3, 4))
    a.wait(lgkm=0)
    signal(12, 1)
    stamp()
    NL = nst[0]
    a.branch('s_branch', 'L_end_l')

    a.label('L_compute')
    RA = [4, 5, 6, 7]; RK8 = [8, 9, 10, 11]
    V_FA, VQ = 'v12', 'v13'
    WA = [14, 15]
    CEPS, MASK, NEGH, IDA = 16, 20, 22, 24
    VHI, VLOG2E = 'v26', 'v27'
    AS = 28
    A2, Q, CQ = 32, 40, 48
    T = [52, 53, 54, 55]
    W2 = 56
    G = [64, 68]
    SD = 72
    KS = 84
    E = 100
    D1 = [116, 132]
    RAW = 148
    OM = 192
    EIGHTH, C1E6 = 180, 184
    X = [182, 183, 188, 189, 190, 191]

    a.other('s_setprio 2')
    a.scmp('s_cmp_eq_u32', S_WAVE, 4)
    a.salu('s_cselect_b32', S_CNT, S_SPLIT, 0)
    for i in range(4):
        a.valu('v_mov_b32', v(W2 + 4 + i), -1)
    a.valu('v_lshlrev_b32', 'v19', 4, V_LANE)
    for i in range(4):
        a.valu('v_mov_b32', v(W2 + i), 0)
    a.salu('s_lshl_b32', S_F, S_J, 4)
    a.salu('s_add_u32', S_F, S_F, LDS_FLG)
    a.valu('v_mov_b32', V_FA, S_F)
    a.salu('s_mov_b64', 'exec', 1)
    a.ds_write('ds_write_b128', V_FA, vr(W2, 4))
    a.salu('s_mov_b64', 'exec', -1)
    a.wait(lgkm=0)
    a.scmp('s_cmp_eq_u32', S_CNT, 0)
    a.branch('s_cbranch_scc1', 'L_noclear')
    a.vmem_store('buffer_store_dwordx4', vr(W2 + 4, 4), 'v19', srd(SRD_WS), S_SLOT, flags='sc1')
    a.label('L_noclear')
    a.other('s_barrier')
    stamp(1)
    if opts.get('nocompute', 0):
        a.salu('s_mov_b64', 'exec', 1)
        a.valu('v_mov_b32', v(X[1]), 1)
        a.ds_write('ds_write_b32', V_FA, v(X[1]), offset=8)
        a.salu('s_mov_b64', 'exec', -1)
        a.wait(lgkm=0)
        nst[0] = 9
        a.branch('s_branch', 'L_idle')
    a.valu('v_lshl_or_b32', v(RA[0]), V_N, 8, 'v14')
    for i in range(1, 4):
        a.valu('v_xor_b32', v(RA[i]), i << 6, v(RA[0]))
    a.valu('v_mov_b32', VHI, '0xffff0000')
    a.valu('v_mov_b32', VLOG2E, hex(f32bits(1.4426950408889634)))
    a.valu('v_lshrrev_b32', v(T[0]), 2, V_N)
    a.valu('v_and_b32', v(T[1]), 3, V_N)
    a.valu('v_and_b32', v(T[2]), 1, V_N)
    a.valu('v_mov_b32', v(T[3]), '0xffff')
    a.vcmp('v_cmp_eq_u32', 'vcc', 1, v(T[2]))
    a.valu('v_cndmask_b32', v(T[3]), v(T[3]), VHI, 'vcc')
    a.vcmp('v_cmp_eq_u32', 'vcc', V_G, v(T[0]))
    a.valu('v_cndmask_b32', v(T[3]), 0, v(T[3]), 'vcc')
    a.vcmp('v_cmp_gt_u32', 'vcc', 2, v(T[1]))
    a.valu('v_cndmask_b32', v(MASK), 0, v(T[3]), 'vcc')
    a.valu('v_cndmask_b32', v(MASK + 1), v(T[3]), 0, 'vcc')
    a.valu('v_and_b32', v(IDA), '0x3f803f80', v(MASK))
    a.valu('v_and_b32', v(IDA + 1), '0x3f803f80', v(MASK + 1))
    a.valu('v_and_b32', v(EIGHTH), '0x3e003e00', v(MASK))
    a.valu('v_and_b32', v(EIGHTH + 1), '0x3e003e00', v(MASK + 1))
    a.valu('v_and_b32', v(AS), '0x3e983e98', v(MASK))
    a.valu('v_and_b32', v(AS + 1), '0x3e983e98', v(MASK + 1))
    a.valu('v_and_b32', v(AS + 2), '0x39e039e0', v(MASK))
    a.valu('v_and_b32', v(AS + 3), '0x39e039e0', v(MASK + 1))
    a.valu('v_mov_b32', v(NEGH), '0xbf00bf00')
    a.valu('v_mov_b32', v(NEGH + 1), '0xbf00bf00')
    for i in range(4):
        a.valu('v_mov_b32', v(C1E6 + i), hex(EPS_BITS))
    a.valu('v_lshlrev_b32', VQ, 4, V_G)
    a.valu('v_add_u32', VQ, LDS_Q, VQ)
    a.valu('v_and_b32', v(X[0]), 3, V_LANE)
    a.valu('v_lshlrev_b32', v(X[0]), 4, v(X[0]))
    a.valu('v_add_u32', v(X[0]), LDS_FLG, v(X[0]))
    for u in range(4):
        a.valu('v_add_u32', v(RK8[u]), S_KLDS, v(RA[u]))
    a.label('L_ompoll')
    a.ds_read('ds_read_b32', v(X[1]), v(X[0]))
    a.wait(lgkm=0)
    a.vcmp('v_cmp_eq_u32', 'vcc', 0, v(X[1]))
    a.branch('s_cbranch_vccz', 'L_omready')
    a.other(f's_sleep {SLEEP}')
    a.salu('s_add_u32', 's58', 's58', 1)
    a.scmp('s_cmp_lt_u32', 's58', 0x80000)
    a.branch('s_cbranch_scc1', 'L_ompoll')
    a.label('L_omready')
    stamp(2)
    for u in range(4):
        for h in range(2):
            p = 2 * u + h
            a.emit(Ins(f'ds_read2_b64 {vr(RAW + 4 * p, 4)}, {VQ} offset0:{8*u+h} offset1:{8*u+h}', 'ds', _regs(VQ), _regs(vr(RAW + 4 * p, 4))))
    for tm in range(4):
        for u in range(4):
            a.ds_read('ds_read_b128', vr(OM + 16 * tm + 4 * u, 4), v(RA[u]), offset=LDS_OM + 4096 * tm)
    for u in range(4):
        a.valu('v_mov_b32', v(RA[u]), v(RK8[u]))
        a.valu('v_add_u32', v(RK8[u]), 8, v(RK8[u]))
    RK = RA

    def cvt(dst, src, tm):
        a.valu('v_cvt_pk_bf16_f32', v(dst + 2 * tm), v(src + 4 * tm), v(src + 4 * tm + 1))
        a.valu('v_cvt_pk_bf16_f32', v(dst + 2 * tm + 1), v(src + 4 * tm + 2), v(src + 4 * tm + 3))

    def front(b):
        g, d1 = G[b], D1[b]
        for p in range(8):
            sd = SD + 4 * (p % 3)
            a.mfma('16x16x32', vr(sd, 4), vr(AS, 4), vr(RAW + 4 * p, 4), 0)
            a.valu('v_cvt_pk_bf16_f32', v(KS + 2 * p), v(sd), v(sd + 1))
            a.valu('v_cvt_pk_bf16_f32', v(KS + 2 * p + 1), v(sd + 2), v(sd + 3))
            if p % 2 == 1:
                u = p // 2
                f = vr(KS + 4 * u, 4)
                a.mfma('16x16x32', vr(g, 4), f, f, 0 if u == 0 else vr(g, 4))
                for tm in range(4):
                    a.mfma('16x16x32', vr(d1 + 4 * tm, 4), vr(OM + 16 * tm + 4 * u, 4), f, 0 if u == 0 else vr(d1 + 4 * tm, 4))

    def back(b, qdst, is_q):
        g, d1 = G[b], D1[b]
        a.valu('v_cvt_pk_bf16_f32', v(T[0]), v(g), v(g + 1))
        a.valu('v_cvt_pk_bf16_f32', v(T[1]), v(g + 2), v(g + 3))
        a.valu('v_and_b32', v(T[0]), v(T[0]), v(MASK))
        a.valu('v_and_b32', v(T[1]), v(T[1]), v(MASK + 1))
        a.mfma('16x16x16', vr(CQ, 4), vr(NEGH, 2), vr(T[0], 2), 0)
        for tm in range(4):
            cvt(qdst, d1, tm)
        for tm in range(4):
            a.mfma('16x16x16', vr(E + 4 * tm, 4), vr(IDA, 2), vr(qdst + 2 * tm, 2), vr(CQ, 4))
        for tm in range(4):
            cvt(qdst, E, tm)
        for tm in range(4):
            for h in range(2):
                x = qdst + 2 * tm + h
                d0, dd1 = d1 + 4 * tm + 2 * h, d1 + 4 * tm + 2 * h + 1
                a.valu('v_lshlrev_b32', v(d0), 16, v(x))
                a.valu('v_and_b32', v(dd1), VHI, v(x))
                a.valu('v_mul_f32', v(d0), VLOG2E, v(d0))
                a.valu('v_mul_f32', v(dd1), VLOG2E, v(dd1))
                a.valu('v_exp_f32', v(d0), v(d0))
                a.valu('v_exp_f32', v(dd1), v(dd1))
        for tm in range(4):
            cvt(qdst, d1, tm)
        if is_q:
            for tm in range(4):
                a.mfma('16x16x16', vr(E + 4 * tm, 4), vr(EIGHTH, 2), vr(qdst + 2 * tm, 2), vr(C1E6, 4))
            for tm in range(4):
                cvt(qdst, E, tm)
            for i in range(4):
                a.valu('v_mov_b32', v(E + i), '0x3f803f80')
            a.mfma('16x16x32', vr(CEPS, 4), vr(A2, 4), vr(E, 4), 0)
            a.mfma('16x16x32', vr(CEPS, 4), vr(A2 + 4, 4), vr(E, 4), vr(CEPS, 4))
            for i in range(8):
                a.valu('v_subrev_u32', v(A2 + i), '0x01800180', v(A2 + i))
            a.valu('v_mov_b32', v(T[2]), hex(EPS_BITS))
            for i in range(4):
                a.valu('v_mul_f32', v(CEPS + i), v(T[2]), v(CEPS + i))

    def wfin(tk):
        w2 = W2 + 4 * (tk & 1)
        a.mfma('16x16x32', vr(w2, 4), vr(A2, 4), vr(Q, 4), vr(CEPS, 4))
        a.mfma('16x16x32', vr(w2, 4), vr(A2 + 4, 4), vr(Q + 4, 4), vr(w2, 4))
        a.valu('v_mov_b32_dpp', v(WA[tk // 4]), v(w2), mods=f'quad_perm:[0,1,2,3] row_mask:{hex(1 << (tk % 4))} bank_mask:0xf', dpp=True)

    def kpoll_read(tk):
        a.label(f'L_kpoll{tk}')
        a.ds_read('ds_read_b32', v(X[1]), V_FA)
        a.wait(lgkm=0)
        a.valu('v_readfirstlane_b32', S_T0, v(X[1]))
        a.scmp('s_cmp_gt_u32', S_T0, tk + 1)
        a.branch('s_cbranch_scc1', f'L_kready{tk}')
        a.other(f's_sleep {SLEEP}')
        a.salu('s_add_u32', 's58', 's58', 1)
        a.scmp('s_cmp_lt_u32', 's58', 0x80000)
        a.branch('s_cbranch_scc1', f'L_kpoll{tk}')
        a.label(f'L_kready{tk}')
        for u in range(4):
            for h in range(2):
                p = 2 * u + h
                addr = v(RK[u]) if h == 0 else v(RK8[u])
                a.emit(Ins(f'ds_read2st64_b64 {vr(RAW + 4 * p, 4)}, {addr} offset0:{8*tk} offset1:{8*tk}', 'ds', _regs(addr), _regs(vr(RAW + 4 * p, 4))))

    a.begin()
    a.wait_for([vr(RAW, 32), vr(OM, 64)], lgkm=0)
    front(1)
    a.end(VERB)
    stamp(3)
    for tk in range(8):
        kpoll_read(tk)
        if tk in (0, 1, 4, 7): stamp()
        a.begin()
        if tk == 0:
            back(1, A2, True)
        else:
            back((tk - 1) & 1, Q, False)
            wfin(tk - 1)
        a.wait_for([vr(RAW, 32)], lgkm=0)
        front(tk & 1)
        a.end(VERB)
        if tk == 0:
            a.scmp('s_cmp_eq_u32', S_CNT, 0)
            a.branch('s_cbranch_scc1', 'L_noflag')
            a.wait(vm=0)
            a.salu('s_mov_b64', 'exec', 1)
            a.valu('v_mov_b32', v(X[1]), 1)
            a.salu('s_lshl_b32', S_T0, S_HEAD, 2)
            a.vmem_store('buffer_atomic_add', v(X[1]), None, srd(SRD_DBG), S_T0, offset=COFF, flags='sc1')
            a.salu('s_mov_b64', 'exec', -1)
            a.label('L_noflag')
    a.begin()
    back(1, Q, False)
    wfin(7)
    for h in range(2):
        a.valu('v_cvt_pk_bf16_f32', v(E + 2 * h), v(WA[h]), v(WA[h]))
        a.valu('v_and_b32', v(T[h]), VHI, v(E + 2 * h))
        a.valu('v_sub_f32', v(T[h]), v(WA[h]), v(T[h]))
        a.valu('v_cvt_pk_bf16_f32', v(E + 2 * h + 1), v(T[h]), v(T[h]))
    a.valu('v_add_f32', v(T[2]), v(WA[0]), v(WA[1]))
    for sh in (8, 4, 2, 1):
        a.valu('v_add_f32_dpp', v(T[2]), v(T[2]), v(T[2]), mods=f'row_ror:{sh} row_mask:0xf bank_mask:0xf', dpp=True)
    a.salu('s_lshl_b32', S_T0, S_J, 10)
    a.salu('s_add_u32', S_T0, S_T0, LDS_WX)
    a.valu('v_lshl_add_u32', v(X[0]), V_LANE, 3, S_T0)
    a.ds_write('ds_write_b64', v(X[0]), vr(E, 2))
    a.ds_write('ds_write_b64', v(X[0]), vr(E + 2, 2), offset=512)
    a.salu('s_lshl_b32', S_T1, S_J, 4)
    a.salu('s_add_u32', S_T1, S_T1, LDS_DEN)
    a.valu('v_lshl_add_u32', v(T[3]), V_G, 2, S_T1)
    a.ds_write('ds_write_b32', v(T[3]), v(T[2]))
    a.end(VERB)
    a.wait(lgkm=0)
    a.salu('s_mov_b64', 'exec', 1)
    a.valu('v_mov_b32', v(X[1]), 1)
    a.ds_write('ds_write_b32', V_FA, v(X[1]), offset=8)
    a.salu('s_mov_b64', 'exec', -1)
    stamp()
    a.scmp('s_cmp_ge_u32', S_WAVE, 6)
    a.branch('s_cbranch_scc1', 'L_idle')
    V_D, RED_R, V_D8, NUM, DEN, FLAG, TT2, SUMN = 4, 5, 6, 7, 8, 9, 10, 11
    DS = 116
    a.valu('v_subrev_u32', v(V_D), 256, V_TID)
    a.valu('v_lshrrev_b32', v(V_D8), 5, v(V_D))
    a.valu('v_and_b32', v(TT2), 7, v(V_D))
    a.valu('v_lshl_add_u32', v(V_D8), v(V_D8), 4, v(TT2))
    a.valu('v_bfe_u32', v(TT2), v(V_D), 3, 2)
    a.valu('v_lshlrev_b32', v(TT2), 2, v(TT2))
    a.valu('v_lshl_add_u32', v(RED_R), v(V_D8), 4, v(TT2))
    a.valu('v_add_u32', v(RED_R), LDS_RED, v(RED_R))
    a.valu('v_lshlrev_b32', v(V_D8), 3, v(V_D))
    a.valu('v_and_b32', v(X[0]), 3, V_LANE)
    a.valu('v_lshlrev_b32', v(X[0]), 4, v(X[0]))
    a.valu('v_add_u32', v(X[0]), LDS_FLG, v(X[0]))
    a.label('L_denpoll')
    a.ds_read('ds_read_b32', v(X[1]), v(X[0]), offset=8)
    a.wait(lgkm=0)
    a.vcmp('v_cmp_ne_u32', 'vcc', 1, v(X[1]))
    a.branch('s_cbranch_vccz', 'L_denready')
    a.other(f's_sleep {SLEEP}')
    a.salu('s_add_u32', 's58', 's58', 1)
    a.scmp('s_cmp_lt_u32', 's58', 0x80000)
    a.branch('s_cbranch_scc1', 'L_denpoll')
    a.label('L_denready')
    a.valu('v_mov_b32', v(X[0]), LDS_DEN)
    for i in range(4):
        a.ds_read('ds_read_b128', vr(DS + 4 * i, 4), v(X[0]), offset=16 * i)
    a.wait(lgkm=0)
    for st in (8, 4, 2):
        for i in range(st):
            a.valu('v_add_f32', v(DS + i), v(DS + i), v(DS + i + st))
    a.valu('v_add_f32', v(DEN), v(DS), v(DS + 1))
    a.valu('v_and_b32', v(X[0]), 3, V_LANE)
    a.valu('v_lshlrev_b32', v(X[0]), 4, v(X[0]))
    a.valu('v_add_u32', v(X[0]), LDS_FLG, v(X[0]))
    def own_num():
        for i in range(8):
            a.ds_read('ds_read_b32', v(DS + i), v(RED_R), offset=1024 * (i >> 1) + 128 * (i & 1))
        a.wait(lgkm=0)
        for st in (4, 2):
            for i in range(st):
                a.valu('v_add_f32', v(DS + i), v(DS + i), v(DS + i + st))
        a.valu('v_add_f32', v(NUM), v(DS), v(DS + 1))
    def pv_wait(tag):
        a.label(f'L_pv{tag}')
        a.ds_read('ds_read_b32', v(X[1]), v(X[0]), offset=12)
        a.wait(lgkm=0)
        a.vcmp('v_cmp_ne_u32', 'vcc', 1, v(X[1]))
        a.branch('s_cbranch_vccz', f'L_pvok{tag}')
        a.salu('s_add_u32', 's58', 's58', 1)
        a.scmp('s_cmp_lt_u32', 's58', 0x100000)
        a.branch('s_cbranch_scc1', f'L_pv{tag}')
        a.label(f'L_pvok{tag}')
    a.scmp('s_cmp_eq_u32', S_SPLIT, 0)
    a.branch('s_cbranch_scc1', 'L_consumer')
    pv_wait('P')
    stamp()
    own_num()
    a.valu('v_min_u32', v(DS), -2, v(NUM))
    a.valu('v_min_u32', v(DS + 1), -2, v(DEN))
    a.vmem_store('buffer_store_dwordx2', vr(DS, 2), v(V_D8), srd(SRD_WS), S_SLOT, flags='sc1')
    a.branch('s_branch', 'L_end_c')
    a.label('L_consumer')
    a.salu('s_mov_b32', S_T1, 0)
    a.salu('s_lshl_b32', S_T0, S_HEAD, 2)
    a.other('s_setprio 3')
    a.label('L_flagloop')
    a.vmem_load('buffer_load_dword', v(FLAG), None, srd(SRD_DBG), S_T0, offset=COFF, flags='sc1')
    a.wait(vm=0)
    a.vcmp('v_cmp_gt_u32', 'vcc', 7, v(FLAG))
    a.branch('s_cbranch_vccz', 'L_flagok')
    a.salu('s_add_u32', S_T1, S_T1, 1)
    a.scmp('s_cmp_gt_u32', S_T1, 0x40000)
    a.branch('s_cbranch_scc0', 'L_flagloop')
    a.label('L_flagok')
    NR = opts.get('rounds', 3)
    PB_ = [132, 148, 164, 84]
    S_ND = S_T3
    a.salu('s_mov_b32', S_T1, 0)
    a.salu('s_mov_b32', S_ND, 0)
    def issue_round(r):
        for j in range(1, 8):
            a.salu('s_add_u32', S_T2, S_SLOT, 1024 * j)
            a.vmem_load('buffer_load_dwordx2', vr(PB_[r] + 2 * j, 2), v(V_D8), srd(SRD_WS), S_T2, flags='sc1')
    for r in range(NR):
        issue_round(r)
        if r < NR - 1 and opts.get('rsleep', 6):
            a.other(f"s_sleep {opts.get('rsleep', 6)}")
    a.label('L_pollloop')
    for r in range(NR):
        B = PB_[r]
        a.wait(vm=7 * (NR - 1))
        a.valu('v_max3_u32', v(TT2), v(B + 2), v(B + 3), v(B + 4))
        for k in range(5):
            a.valu('v_max3_u32', v(TT2), v(TT2), v(B + 5 + 2 * k), v(B + 6 + 2 * k))
        a.valu('v_max_u32', v(TT2), v(TT2), v(B + 15))
        a.vcmp('v_cmp_eq_u32', 'vcc', -1, v(TT2))
        a.branch('s_cbranch_vccz', f'L_done{r}')
        issue_round(r)
        a.scmp('s_cmp_lg_u32', S_ND, 0)
        a.branch('s_cbranch_scc1', f'L_nd{r}')
        a.ds_read('ds_read_b32', v(X[1]), v(X[0]), offset=12)
        a.wait(lgkm=0)
        a.vcmp('v_cmp_ne_u32', 'vcc', 1, v(X[1]))
        a.branch('s_cbranch_vccnz', f'L_nd{r}')
        own_num()
        a.salu('s_mov_b32', S_ND, 1)
        a.label(f'L_nd{r}')
    a.salu('s_add_u32', S_T1, S_T1, 1)
    a.scmp('s_cmp_gt_u32', S_T1, 0x20000)
    a.branch('s_cbranch_scc0', 'L_pollloop')
    for r in range(NR):
        B = PB_[r]
        a.label(f'L_done{r}')
        a.valu('v_add_f32', v(SUMN), v(B + 2), v(B + 4))
        a.valu('v_add_f32', v(DEN), v(DEN), v(B + 3))
        for j in range(2, 8):
            if j > 2: a.valu('v_add_f32', v(SUMN), v(SUMN), v(B + 2 * j))
            a.valu('v_add_f32', v(DEN), v(DEN), v(B + 2 * j + 1))
        if r < NR - 1:
            a.branch('s_branch', 'L_fin')
    a.label('L_fin')
    a.scmp('s_cmp_lg_u32', S_ND, 0)
    a.branch('s_cbranch_scc1', 'L_fin2')
    pv_wait('C')
    own_num()
    a.label('L_fin2')
    stamp()
    a.valu('v_add_f32', v(NUM), v(NUM), v(SUMN))
    a.valu('v_add_f32', v(DEN), hex(EPS_BITS), v(DEN))
    a.valu('v_rcp_f32', v(TT2), v(DEN))
    a.valu('v_mul_f32', v(NUM), v(NUM), v(TT2))
    a.valu('v_cvt_pk_bf16_f32', v(NUM), v(NUM), v(NUM))
    a.salu('s_lshl_b32', S_T0, S_HEAD, 8)
    a.valu('v_lshlrev_b32', v(TT2), 1, v(V_D))
    a.vmem_store('buffer_store_short', v(NUM), v(TT2), srd(SRD_OUT), S_T0, flags={0: '', 1: 'sc1', 2: 'sc0 sc1', 3: 'nt'}[opts.get('outf', 0)])
    a.branch('s_branch', 'L_end_c')
    a.label('L_idle')
    a.label('L_end_c')
    stamp()
    a.label('L_end_l')
    dump_stamps(max(NL, nst[0]))
    if DBGT:
        a.emit(Ins('s_memrealtime s[6:7]', 'other'))
        a.salu('s_getreg_b32', 's52', 'hwreg(HW_REG_XCC_ID)')
        a.salu('s_and_b32', 's52', 's52', 7)
        a.salu('s_lshl_b32', 's52', 's52', 2)
        a.wait(lgkm=0)
        a.salu('s_mov_b64', 'exec', 1)
        a.salu('s_not_b32', 's4', 's4')
        a.valu('v_mov_b32', 'v100', 's4')
        a.valu('v_mov_b32', 'v101', 's6')
        a.vmem_store('buffer_atomic_umax', 'v100', None, srd(SRD_DBG), 's52', flags='sc1')
        a.vmem_store('buffer_atomic_umax', 'v101', None, srd(SRD_DBG), 's52', offset=32, flags='sc1')
    a.label('L_end')
    a.other('s_endpgm')

    hdr = open('standalone__linear_kernel_rfa__decode.s.ref').read().split('\n')
    head_comments = [l for l in hdr if l.startswith(';') and '@launch' not in l and 'Override' not in l and 'grid=ceil' not in l]
    txt = '\n'.join(head_comments) + '\n'
    txt += f'; @launch grid=(256,1,1) block=(512,1,1) lds={LDS_TOTAL}\n'
    txt += '.amdgcn_target "amdgcn-amd-amdhsa--gfx950"\n.text\n'
    txt += f'.globl {KNAME}\n.p2align 8\n.type {KNAME},@function\n{KNAME}:\n'
    txt += a.text()
    txt += f'''.section .rodata,"a"
.p2align 6
.amdhsa_kernel {KNAME}
  .amdhsa_next_free_vgpr 256
  .amdhsa_next_free_sgpr 102
  .amdhsa_accum_offset 256
  .amdhsa_group_segment_fixed_size 0
  .amdhsa_kernarg_size 56
  .amdhsa_user_sgpr_count 2
  .amdhsa_user_sgpr_kernarg_segment_ptr 1
  .amdhsa_system_sgpr_workgroup_id_x 1
  .amdhsa_float_denorm_mode_32 3
.end_amdhsa_kernel
'''
    return txt, a

if __name__ == '__main__':
    out = sys.argv[1]
    opts = {}
    for kv in sys.argv[2:]:
        k, val = kv.split('=')
        opts[k] = int(val, 0)
    txt, a = gen(opts)
    open(out, 'w').write(txt)
    print('instructions', a.count, 'nop states', a.nops)
```
